```python
import torch

def _softmax(x, axis=-1):
    return torch.softmax(x, dim=axis)
def _gelu(x):
    return torch.nn.functional.gelu(x, approximate="tanh")
def _silu(x):
    return torch.nn.functional.silu(x)
def _sigmoid(x):
    return torch.sigmoid(x)
def _layernorm(x, axis=-1, eps=1e-5):
    m = x.mean(dim=axis, keepdim=True)
    v = x.var(dim=axis, keepdim=True, unbiased=False)
    return (x - m) / torch.sqrt(v + eps)
def _scatter_add(tgt, idx, src, axis=0):
    return tgt.clone().index_add_(axis, idx, src)
def _segment_sum(src, seg, n):
    out = torch.zeros((n,) + src.shape[1:], dtype=src.dtype)
    return out.index_add_(0, seg, src)
def _pad(x, pw):
    flat = tuple(v for pair in reversed(pw) for v in pair)
    return torch.nn.functional.pad(x, flat)

kernel_name = 'standalone__batchnorm__prompt'

def setup_inputs():

    _w = (lambda a: (lambda t: t.to(torch.bfloat16) if t.is_floating_point() else t)(torch.as_tensor(a)))
    B, S, C = 2, 2048, 576
    K = 3
    return {
        "x": _w((lambda *s: torch.randn(*s, dtype=torch.bfloat16) * 0.05)(B, S, C)),
        "w": _w((lambda *s: torch.randn(*s, dtype=torch.bfloat16) * 0.05)(K, C, C) * (1.0 / (K * C) ** 0.5)),
        "mean": _w((lambda *s: torch.randn(*s, dtype=torch.bfloat16) * 0.05)(C) * 0.1),
        "var": _w(torch.abs((lambda *s: torch.randn(*s, dtype=torch.bfloat16) * 0.05)(C)) + 0.5),
        "g": _w((lambda *s: torch.randn(*s, dtype=torch.bfloat16) * 0.05)(C) + 1.0),
        "b": _w((lambda *s: torch.randn(*s, dtype=torch.bfloat16) * 0.05)(C) * 0.1),
    }

def reference(x, w, mean, var, g, b):
    K = 3
    P = K // 2
    S = x.shape[1]
    xp = _pad(x, ((0, 0), (P, P), (0, 0)))
    y = sum(torch.einsum('bsc,cd->bsd', xp[:, k:k + S, :], w[k]) for k in range(K))
    inv_std = 1.0 / torch.sqrt(var + 1e-5)
    y = (y - mean) * (g * inv_std) + b
    return _silu(y)
```

```python
import sys

KNAME = "standalone__batchnorm__prompt_kernel"
S = 2048; C = 576; ROWB = 1152
BATCHB = S * ROWB
WBYTES = 3 * C * C * 2
MT = 160; NBLK = 13; NMB = 26; NNS = 9; NWG = NMB * NNS
XS = 168 * 128
NX = 3
WB = NX * XS
NW = 24
LDS_BYTES = WB + NW * 4096
NCH = 9
STEPS = [(X, hh, k) for X in range(NCH) for hh in range(2) for k in range(3)]

class Gen:
    def __init__(self):
        self.lines = []
        self.vm = []
        self.nv = 0
        self.ns = 0
    def e(self, s):
        self.lines.append("    " + s)
    def c(self, s):
        self.lines.append("    ; " + s)
    def label(self, s):
        self.lines.append(s + ":")
    def valloc(self, n, align=1):
        self.nv = (self.nv + align - 1) // align * align
        r = self.nv; self.nv += n; return r
    def vmem(self, tag, text):
        self.e(text); self.vm.append(tag)
    def wait_vm(self, need, extra=""):
        last = -1
        for i, t in enumerate(self.vm):
            if need(t): last = i
        assert last >= 0
        n = len(self.vm) - 1 - last
        assert n <= 63
        self.e(f"s_waitcnt vmcnt({n}){extra}")

def vr(a, n=1):
    return f"v{a}" if n == 1 else f"v[{a}:{a+n-1}]"
def sr(a, n=1):
    return f"s{a}" if n == 1 else f"s[{a}:{a+n-1}]"

def gen(dbg=None):
    g = Gen()
    e = g.e
    S_X, S_W, S_MEAN, S_VAR, S_G, S_B, S_OUT = 4, 6, 8, 10, 12, 14, 16
    R_X, R_W, R_OUT, R_MEAN, R_VAR, R_G, R_B = 20, 24, 28, 32, 36, 40, 44
    sJ, sT, sV, sMB, sNS, sBB, sBLK, sM0, sN0, sWV, sTMP, sTMP2 = 48, 49, 50, 51, 52, 53, 54, 55, 56, 57, 58, 59
    sWV1K, sTAIL, sSOFF, sP80, sQ = 60, 61, 62, 63, 64
    sEX = 66
    nsgpr = 72
    g.valloc(1)
    vL = g.valloc(1); vG = g.valloc(1); vT = g.valloc(1)
    t0 = g.valloc(1); t1 = g.valloc(1); t2 = g.valloc(1); t3 = g.valloc(1); t4 = g.valloc(1); t5 = g.valloc(1)
    vX0 = g.valloc(1); vX1 = g.valloc(1); vWO = g.valloc(1); vOUT = g.valloc(1); vPO = g.valloc(1)
    xaddr = {(k, hh): g.valloc(1) for k in range(3) for hh in range(2)}
    waddr = {(win, n): g.valloc(1) for win in range(2) for n in range(2)}
    praw = g.valloc(16, 2)
    vS = g.valloc(8); vSH = g.valloc(8)
    ACC = {}
    for k in range(3):
        for i in range(5):
            for n in range(2):
                ACC[(k, i, n)] = g.valloc(4, 4)
    XF = {(b, i): g.valloc(4, 4) for b in range(2) for i in range(5)}
    WF = {(b, n): g.valloc(4, 4) for b in range(2) for n in range(2)}
    nvgpr = g.nv
    assert nvgpr <= 256, nvgpr

    e(f"s_cmp_ge_u32 s2, {NWG}")
    e("s_cbranch_scc1 L_end")
    e(f"s_load_dwordx16 s[4:19], s[0:1], 0")
    e(f"s_and_b32 s{sJ}, s2, 7")
    e(f"s_lshr_b32 s{sT}, s2, 3")
    e(f"s_mul_i32 s{sV}, s{sJ}, 29")
    e(f"s_min_u32 s{sTMP}, s{sJ}, 2")
    e(f"s_add_u32 s{sV}, s{sV}, s{sTMP}")
    e(f"s_add_u32 s{sV}, s{sV}, s{sT}")
    e(f"s_mul_i32 s{sMB}, s{sV}, 7282")
    e(f"s_lshr_b32 s{sMB}, s{sMB}, 16")
    e(f"s_mul_i32 s{sTMP}, s{sMB}, 9")
    e(f"s_sub_u32 s{sNS}, s{sV}, s{sTMP}")
    e(f"s_cmp_ge_u32 s{sMB}, 13")
    e(f"s_cselect_b32 s{sBB}, 1, 0")
    e(f"s_mul_i32 s{sTMP}, s{sBB}, 13")
    e(f"s_sub_u32 s{sBLK}, s{sMB}, s{sTMP}")
    e(f"s_mul_i32 s{sM0}, s{sBLK}, {MT}")
    e(f"s_lshl_b32 s{sN0}, s{sNS}, 6")
    e(f"v_and_b32 v{vL}, 63, v0")
    e(f"v_lshrrev_b32 v{t0}, 6, v0")
    e(f"v_lshrrev_b32 v{vG}, 4, v{vL}")
    e(f"v_readfirstlane_b32 s{sWV}, v{t0}")
    e(f"v_and_b32 v{vT}, 15, v{vL}")
    e("s_nop 3")
    e(f"s_lshl_b32 s{sWV1K}, s{sWV}, 10")
    e(f"s_lshr_b32 s{sTMP}, s{sWV}, 1")
    e(f"s_mul_i32 s{sP80}, s{sTMP}, 80")
    e(f"s_and_b32 s{sQ}, s{sWV}, 1")
    e(f"s_lshl_b32 s{sTMP}, s{sWV}, 3")
    e(f"s_sub_u32 s{sTMP}, 128, s{sTMP}")
    e(f"s_mul_i32 s{sTAIL}, s{sTMP}, {ROWB}")
    e("s_waitcnt lgkmcnt(0)")
    e(f"s_mul_i32 s{sTMP}, s{sBB}, {BATCHB}")
    e(f"s_add_u32 s{R_X}, s{S_X}, s{sTMP}")
    e(f"s_addc_u32 s{R_X+1}, s{S_X+1}, 0")
    e(f"s_and_b32 s{R_X+1}, s{R_X+1}, 0xffff")
    e(f"s_mov_b32 s{R_X+2}, {BATCHB}")
    e(f"s_mov_b32 s{R_X+3}, 0x00020000")
    e(f"s_add_u32 s{R_OUT}, s{S_OUT}, s{sTMP}")
    e(f"s_addc_u32 s{R_OUT+1}, s{S_OUT+1}, 0")
    e(f"s_and_b32 s{R_OUT+1}, s{R_OUT+1}, 0xffff")
    e(f"s_mov_b32 s{R_OUT+2}, {BATCHB}")
    e(f"s_mov_b32 s{R_OUT+3}, 0x00020000")
    for R, P, nb in ((R_W, S_W, WBYTES), (R_MEAN, S_MEAN, 1152), (R_VAR, S_VAR, 1152), (R_G, S_G, 1152), (R_B, S_B, 1152)):
        e(f"s_mov_b32 s{R}, s{P}")
        e(f"s_and_b32 s{R+1}, s{P+1}, 0xffff")
        e(f"s_mov_b32 s{R+2}, {nb}")
        e(f"s_mov_b32 s{R+3}, 0x00020000")
    e(f"v_lshrrev_b32 v{t0}, 3, v{vL}")
    e(f"v_lshrrev_b32 v{t1}, 4, v{vL}")
    e(f"v_lshlrev_b32 v{t1}, 1, v{t1}")
    e(f"v_and_b32 v{t2}, 7, v{vL}")
    e(f"v_xor_b32 v{t2}, v{t2}, v{t1}")
    e(f"v_lshlrev_b32 v{t2}, 4, v{t2}")
    e(f"s_sub_u32 s{sTMP}, s{sM0}, 1")
    e(f"s_lshl_b32 s{sTMP2}, s{sWV}, 3")
    e(f"s_add_u32 s{sTMP}, s{sTMP}, s{sTMP2}")
    e(f"v_add_u32 v{t3}, s{sTMP}, v{t0}")
    e(f"s_movk_i32 s{sTMP2}, {ROWB}")
    e(f"v_mul_lo_u32 v{vX0}, v{t3}, s{sTMP2}")
    e(f"v_add_u32 v{vX0}, v{vX0}, v{t2}")
    e(f"v_add_u32 v{vX1}, 32, v{t3}")
    e(f"v_mul_lo_u32 v{vX1}, v{vX1}, s{sTMP2}")
    e(f"v_add_u32 v{vX1}, v{vX1}, v{t2}")
    e(f"v_cmp_gt_i32 vcc, 0, v{t3}")
    e(f"v_mov_b32 v{t4}, 0x40000000")
    e("s_nop 1")
    e(f"v_cndmask_b32 v{vX0}, v{vX0}, v{t4}, vcc")
    e(f"s_lshl_b32 s{sTMP}, s{sWV}, 3")
    e(f"v_add_u32 v{t3}, s{sTMP}, v{t0}")
    e(f"v_mul_lo_u32 v{vWO}, v{t3}, s{sTMP2}")
    e(f"v_lshrrev_b32 v{t1}, 4, v{vL}")
    e(f"v_and_b32 v{t1}, 1, v{t1}")
    e(f"v_lshlrev_b32 v{t1}, 1, v{t1}")
    e(f"s_lshl_b32 s{sTMP}, s{sQ}, 2")
    e(f"v_or_b32 v{t1}, s{sTMP}, v{t1}")
    e(f"v_and_b32 v{t2}, 7, v{vL}")
    e(f"v_xor_b32 v{t2}, v{t2}, v{t1}")
    e(f"v_lshlrev_b32 v{t2}, 4, v{t2}")
    e(f"v_add_u32 v{vWO}, v{vWO}, v{t2}")
    e(f"s_lshl_b32 s{sTMP}, s{sN0}, 1")
    e(f"v_add_u32 v{vWO}, s{sTMP}, v{vWO}")

    def dma_x(X, jj):
        slot = X % NX
        if jj < 5:
            e(f"s_add_u32 m0, s{sWV1K}, {slot * XS + jj * 4096}")
            if jj == 0:
                e(f"s_movk_i32 s{sSOFF}, {128 * X}")
                g.vmem(('x', X), f"buffer_load_dwordx4 v{vX0}, s[{R_X}:{R_X+3}], s{sSOFF} offen lds")
            else:
                e(f"s_mov_b32 s{sSOFF}, {(jj - 1) * 32 * ROWB + 128 * X}")
                g.vmem(('x', X), f"buffer_load_dwordx4 v{vX1}, s[{R_X}:{R_X+3}], s{sSOFF} offen lds")
        else:
            e(f"s_mov_b32 m0, {slot * XS + 20 * 1024}")
            e(f"s_add_u32 s{sSOFF}, s{sTAIL}, {128 * X}")
            e(f"s_mov_b64 exec, 0xffff")
            g.vmem(('x', X), f"buffer_load_dwordx4 v{vX1}, s[{R_X}:{R_X+3}], s{sSOFF} offen lds")
            e(f"s_mov_b64 exec, -1")
    def dma_w(s):
        X, hh, k = STEPS[s]
        slot = s % NW
        cc = 2 * X + hh
        e(f"s_add_u32 m0, s{sWV1K}, {WB + slot * 4096}")
        e(f"s_mov_b32 s{sSOFF}, {(k * C + 32 * cc) * ROWB}")
        g.vmem(('w', s), f"buffer_load_dwordx4 v{vWO}, s[{R_W}:{R_W+3}], s{sSOFF} offen lds")

    for jj in range(6): dma_x(0, jj)
    for s in range(0, 6): dma_w(s)
    for jj in range(6): dma_x(1, jj)
    for s in range(6, 12): dma_w(s)
    for jj in range(6): dma_x(2, jj)
    for s in range(12, 24): dma_w(s)

    e(f"s_lshl_b32 s{sTMP}, s{sQ}, 5")
    e(f"s_add_u32 s{sTMP}, s{sTMP}, s{sN0}")
    e(f"v_lshlrev_b32 v{t0}, 2, v{vG}")
    e(f"v_add_u32 v{t0}, s{sTMP}, v{t0}")
    e(f"v_lshlrev_b32 v{vPO}, 1, v{t0}")
    for idx, R in enumerate((R_MEAN, R_VAR, R_G, R_B)):
        g.vmem(('p', idx), f"buffer_load_dwordx2 v[{praw+4*idx}:{praw+4*idx+1}], v{vPO}, s[{R}:{R+3}], 0 offen")
        g.vmem(('p', idx), f"buffer_load_dwordx2 v[{praw+4*idx+2}:{praw+4*idx+3}], v{vPO}, s[{R}:{R+3}], 0 offen offset:32")

    for k in range(3):
        e(f"v_add_u32 v{t0}, s{sP80}, v{vT}")
        if k: e(f"v_add_u32 v{t0}, {k}, v{t0}")
        e(f"v_lshrrev_b32 v{t1}, 1, v{t0}")
        e(f"v_and_b32 v{t1}, 3, v{t1}")
        e(f"v_lshlrev_b32 v{t1}, 1, v{t1}")
        e(f"v_lshlrev_b32 v{t2}, 7, v{t0}")
        for hh in range(2):
            e(f"v_add_u32 v{t3}, {4*hh}, v{vG}")
            e(f"v_xor_b32 v{t3}, v{t3}, v{t1}")
            e(f"v_lshl_add_u32 v{xaddr[(k,hh)]}, v{t3}, 4, v{t2}")
    e(f"v_lshrrev_b32 v{t0}, 2, v{vT}")
    e(f"v_and_b32 v{t1}, 3, v{vT}")
    e(f"v_lshl_add_u32 v{t2}, v{vG}, 3, v{t0}")
    e(f"v_lshlrev_b32 v{t2}, 7, v{t2}")
    e(f"v_and_b32 v{t3}, 1, v{vG}")
    e(f"v_lshlrev_b32 v{t3}, 2, v{t3}")
    e(f"v_lshrrev_b32 v{t4}, 1, v{t0}")
    e(f"v_and_b32 v{t4}, 1, v{t4}")
    e(f"v_lshl_add_u32 v{t3}, v{t4}, 1, v{t3}")
    e(f"v_and_b32 v{t4}, 1, v{t1}")
    e(f"v_lshl_add_u32 v{t2}, v{t4}, 3, v{t2}")
    e(f"v_lshrrev_b32 v{t4}, 1, v{t1}")
    e(f"s_lshl_b32 s{sTMP}, s{sQ}, 2")
    e(f"v_add_u32 v{t4}, s{sTMP}, v{t4}")
    for n in range(2):
        e(f"v_add_u32 v{t5}, {2*n}, v{t4}")
        e(f"v_xor_b32 v{t5}, v{t5}, v{t3}")
        e(f"v_lshl_add_u32 v{t5}, v{t5}, 4, v{t2}")
        for win in range(2):
            e(f"v_add_u32 v{waddr[(win,n)]}, {WB + win * 65536}, v{t5}")
    e(f"s_add_u32 s{sTMP}, s{sM0}, s{sP80}")
    e(f"v_add_u32 v{t0}, s{sTMP}, v{vT}")
    e(f"s_movk_i32 s{sTMP2}, {ROWB}")
    e(f"v_mul_lo_u32 v{vOUT}, v{t0}, s{sTMP2}")
    e(f"v_and_b32 v{t1}, 1, v{vG}")
    e(f"v_lshlrev_b32 v{t1}, 5, v{t1}")
    e(f"v_lshrrev_b32 v{t2}, 1, v{vG}")
    e(f"v_lshl_add_u32 v{t1}, v{t2}, 4, v{t1}")
    e(f"s_lshl_b32 s{sTMP}, s{sQ}, 5")
    e(f"s_add_u32 s{sTMP}, s{sTMP}, s{sN0}")
    e(f"s_lshl_b32 s{sTMP}, s{sTMP}, 1")
    e(f"v_add_u32 v{vOUT}, v{vOUT}, v{t1}")
    e(f"v_add_u32 v{vOUT}, s{sTMP}, v{vOUT}")

    g.wait_vm(lambda t: t[0] == 'p')
    def unpack(dst, src, hi):
        if hi: e(f"v_and_b32 v{dst}, 0xffff0000, v{src}")
        else:  e(f"v_lshlrev_b32 v{dst}, 16, v{src}")
    def bf16r_pair(a, b, tmp):
        e(f"v_cvt_pk_bf16_f32 v{tmp}, v{a}, v{b}")
        e("s_nop 0")
        e(f"v_lshlrev_b32 v{a}, 16, v{tmp}")
        e(f"v_and_b32 v{b}, 0xffff0000, v{tmp}")
    e(f"s_mov_b32 s{sTMP}, 0x3727c5ac")
    for n in range(2):
        for rp in range(2):
            a, b2 = t0, t1
            src = praw + 4 * 1 + 2 * n + rp
            unpack(a, src, 0); unpack(b2, src, 1)
            e(f"v_add_f32 v{a}, s{sTMP}, v{a}")
            e(f"v_add_f32 v{b2}, s{sTMP}, v{b2}")
            bf16r_pair(a, b2, t2)
            e(f"v_sqrt_f32 v{a}, v{a}")
            e(f"v_sqrt_f32 v{b2}, v{b2}")
            e("s_nop 0")
            bf16r_pair(a, b2, t2)
            e(f"v_rcp_f32 v{a}, v{a}")
            e(f"v_rcp_f32 v{b2}, v{b2}")
            e("s_nop 0")
            bf16r_pair(a, b2, t2)
            src = praw + 4 * 2 + 2 * n + rp
            unpack(t3, src, 0); unpack(t4, src, 1)
            e(f"v_mul_f32 v{a}, v{a}, v{t3}")
            e(f"v_mul_f32 v{b2}, v{b2}, v{t4}")
            bf16r_pair(a, b2, t2)
            i0 = n * 4 + 2 * rp
            e(f"v_mov_b32 v{vS+i0}, v{a}")
            e(f"v_mov_b32 v{vS+i0+1}, v{b2}")
            srcm = praw + 4 * 0 + 2 * n + rp
            srcb = praw + 4 * 3 + 2 * n + rp
            unpack(t3, srcm, 0); unpack(t4, srcm, 1)
            unpack(t5, srcb, 0); unpack(t2, srcb, 1)
            e(f"v_fma_f32 v{vSH+i0}, -v{t3}, v{a}, v{t5}")
            e(f"v_fma_f32 v{vSH+i0+1}, -v{t4}, v{b2}, v{t2}")

    def read_frags(s, b):
        X, hh, k = STEPS[s]
        out = []
        for i in range(5):
            out.append(f"ds_read_b128 {vr(XF[(b,i)],4)}, v{xaddr[(k,hh)]} offset:{(X % NX) * XS + i * 2048}")
        slot = s % NW
        win = slot // 16
        for n in range(2):
            for h in range(2):
                out.append(f"ds_read_b64_tr_b16 {vr(WF[(b,n)] + 2*h, 2)}, v{waddr[(win,n)]} offset:{(slot - 16*win) * 4096 + h * 512}")
        return out

    g.wait_vm(lambda t: t == ('x', 0) or (t[0] == 'w' and t[1] < 6))
    e("s_barrier")
    for ins in read_frags(0, 0): e(ins)

    nsteps = len(STEPS)
    pend = []
    for s in range(nsteps):
        X, hh, k = STEPS[s]
        b = s % 2
        e("s_waitcnt lgkmcnt(0)")
        last_of_chunk = (s % 6 == 5)
        if last_of_chunk and s + 1 < nsteps:
            Xn = X + 1
            g.wait_vm(lambda t: t == ('x', Xn) or (t[0] == 'w' and 6 * Xn <= t[1] < 6 * Xn + 6))
            e("s_barrier")
            if X + 3 < NCH:
                for jj in range(6): pend.append(lambda X=X, jj=jj: dma_x(X + 3, jj))
            for s2 in range(6 * (X + 4), min(6 * (X + 5), nsteps)):
                pend.append(lambda s2=s2: dma_w(s2))
        fill = []
        if s + 1 < nsteps:
            fill += [("ds", ins) for ins in read_frags(s + 1, 1 - b)]
        mf = []
        for i in range(5):
            for n in range(2):
                acc = ACC[(k, i, n)]
                first = (X == 0 and hh == 0)
                cin = "0" if first else vr(acc, 4)
                mf.append(f"v_mfma_f32_16x16x32_bf16 {vr(acc,4)}, {vr(WF[(b,n)],4)}, {vr(XF[(b,i)],4)}, {cin}")
        fi = 0
        for mi, m in enumerate(mf):
            e(m)
            cnt = 0
            while cnt < 2 and fi < len(fill):
                e(fill[fi][1]); fi += 1; cnt += 1
            if fi >= len(fill) and cnt < 2 and pend:
                pend.pop(0)()
        while fi < len(fill):
            e(fill[fi][1]); fi += 1
    assert not pend

    e("; ---- epilogue")
    e("s_nop 7")
    e("s_nop 1")
    LOG2E = 0x3fb8aa3b
    e(f"s_mov_b32 s{sTMP}, {LOG2E | 0x80000000}")
    tmpbase = XF[(0, 0)]
    for i in range(5):
        tb = tmpbase + (i % 2) * 24
        Z = [tb + j for j in range(8)]
        E_ = [tb + 8 + j for j in range(8)]
        P = tb + 16
        for n in range(2):
            for r in range(4):
                j = n * 4 + r
                a0, a1, a2 = ACC[(0, i, n)] + r, ACC[(1, i, n)] + r, ACC[(2, i, n)] + r
                e(f"v_add_f32 v{Z[j]}, v{a0}, v{a1}")
                e(f"v_add_f32 v{Z[j]}, v{Z[j]}, v{a2}")
        for j in range(8):
            e(f"v_fma_f32 v{Z[j]}, v{Z[j]}, v{vS+j}, v{vSH+j}")
        for j in range(8):
            e(f"v_mul_f32 v{E_[j]}, s{sTMP}, v{Z[j]}")
        for j in range(8):
            e(f"v_exp_f32 v{E_[j]}, v{E_[j]}")
        for j in range(8):
            e(f"v_add_f32 v{E_[j]}, 1.0, v{E_[j]}")
        for j in range(8):
            e(f"v_rcp_f32 v{E_[j]}, v{E_[j]}")
        for j in range(8):
            e(f"v_mul_f32 v{Z[j]}, v{Z[j]}, v{E_[j]}")
        e(f"v_cvt_pk_bf16_f32 v{P+0}, v{Z[0]}, v{Z[1]}")
        e(f"v_cvt_pk_bf16_f32 v{P+1}, v{Z[2]}, v{Z[3]}")
        e(f"v_cvt_pk_bf16_f32 v{P+2}, v{Z[4]}, v{Z[5]}")
        e(f"v_cvt_pk_bf16_f32 v{P+3}, v{Z[6]}, v{Z[7]}")
        e("s_nop 1")
        e(f"v_permlane16_swap_b32 v{P+0}, v{P+2}")
        e(f"v_permlane16_swap_b32 v{P+1}, v{P+3}")
        e(f"s_mov_b32 s{sSOFF}, {i * 16 * ROWB}")
        e("s_nop 0")
        g.vmem(('st', i), f"buffer_store_dwordx4 {vr(P,4)}, v{vOUT}, s[{R_OUT}:{R_OUT+3}], s{sSOFF} offen")
    g.label("L_end")
    e("s_endpgm")

    hdr = f"""; generated by dev/gen.py -- conv1d(K=3)+BN+SiLU, MFMA 16x16x32 bf16, LDS-DMA staging
; @launch grid=({NWG},1,1) block=(256,1,1) lds={LDS_BYTES}
.amdgcn_target "amdgcn-amd-amdhsa--gfx950"
.text
.globl {KNAME}
.p2align 8
.type {KNAME},@function
{KNAME}:
"""
    nva = (nvgpr + 3) // 4 * 4
    ftr = f"""
.section .rodata,"a"
.p2align 6
.amdhsa_kernel {KNAME}
  .amdhsa_next_free_vgpr {nva}
  .amdhsa_next_free_sgpr {nsgpr}
  .amdhsa_accum_offset {nva}
  .amdhsa_group_segment_fixed_size 0
  .amdhsa_kernarg_size 72
  .amdhsa_user_sgpr_count 2
  .amdhsa_user_sgpr_kernarg_segment_ptr 1
  .amdhsa_system_sgpr_workgroup_id_x 1
.end_amdhsa_kernel
"""
    return hdr + "\n".join(g.lines) + "\n" + ftr

if __name__ == "__main__":
    out = sys.argv[1] if len(sys.argv) > 1 else "standalone__batchnorm__prompt.s"
    txt = gen()
    open(out, "w").write(txt)
    print("wrote", out, len(txt.splitlines()), "lines")
```

```python
import sys

KNAME = "standalone__batchnorm__prompt_kernel"
S = 2048; C = 576; ROWB = 1152
BATCHB = S * ROWB
WBYTES = 3 * C * C * 2
MT = 160; NBLK = 13; NMB = 26; NNS = 9; NWG = NMB * NNS
XS = 168 * 128
NX = 3
WB = NX * XS
NW = 24
LDS_BYTES = WB + NW * 4096
NCH = 9
STEPS = [(X, hh, k) for X in range(NCH) for hh in range(2) for k in range(3)]

class Gen:
    def __init__(self):
        self.lines = []
        self.vm = []
        self.nv = 0
        self.ns = 0
    def e(self, s):
        self.lines.append("    " + s)
    def c(self, s):
        self.lines.append("    ; " + s)
    def label(self, s):
        self.lines.append(s + ":")
    def valloc(self, n, align=1):
        self.nv = (self.nv + align - 1) // align * align
        r = self.nv; self.nv += n; return r
    def vmem(self, tag, text):
        self.e(text); self.vm.append(tag)
    def wait_vm(self, need, extra=""):
        last = -1
        for i, t in enumerate(self.vm):
            if need(t): last = i
        assert last >= 0
        n = len(self.vm) - 1 - last
        assert n <= 63
        self.e(f"s_waitcnt vmcnt({n}){extra}")

def vr(a, n=1):
    return f"v{a}" if n == 1 else f"v[{a}:{a+n-1}]"
def sr(a, n=1):
    return f"s{a}" if n == 1 else f"s[{a}:{a+n-1}]"

import os
EXP = os.environ.get('EXP', '')
def gen(dbg=None):
    g = Gen()
    e = g.e
    STAMPS = dbg == 'stamps'
    nst = [0]
    ST0 = 68
    def stamp(real=False):
        if not STAMPS: return
        i = nst[0]; nst[0] += 1
        assert ST0 + 2*i + 1 < 102
        e(f"s_memrealtime s[{ST0+2*i}:{ST0+2*i+1}]" if real else f"s_memtime s[{ST0+2*i}:{ST0+2*i+1}]")
    S_X, S_W, S_MEAN, S_VAR, S_G, S_B, S_OUT = 4, 6, 8, 10, 12, 14, 16
    R_X, R_W, R_OUT, R_MEAN, R_VAR, R_G, R_B = 20, 24, 28, 32, 36, 40, 44
    sJ, sT, sV, sMB, sNS, sBB, sBLK, sM0, sN0, sWV, sTMP, sTMP2 = 48, 49, 50, 51, 52, 53, 54, 55, 56, 57, 58, 59
    sWV1K, sTAIL, sSOFF, sP80, sQ = 60, 61, 62, 63, 64
    sEX = 66
    nsgpr = 102 if STAMPS else 68
    g.valloc(1)
    vL = g.valloc(1); vG = g.valloc(1); vT = g.valloc(1)
    t0 = g.valloc(1); t1 = g.valloc(1); t2 = g.valloc(1); t3 = g.valloc(1); t4 = g.valloc(1); t5 = g.valloc(1)
    vX0 = g.valloc(1); vX1 = g.valloc(1); vWO = g.valloc(1); vOUT = g.valloc(1); vPO = g.valloc(1)
    xaddr = {(k, hh): g.valloc(1) for k in range(3) for hh in range(2)}
    waddr = {(win, n): g.valloc(1) for win in range(2) for n in range(2)}
    praw = g.valloc(16, 2)
    vS = g.valloc(8); vSH = g.valloc(8)
    ACC = {}
    for k in range(3):
        for i in range(5):
            for n in range(2):
                ACC[(k, i, n)] = g.valloc(4, 4)
    XF = {(b, i): g.valloc(4, 4) for b in range(2) for i in range(5)}
    WF = {(b, n): g.valloc(4, 4) for b in range(2) for n in range(2)}
    nvgpr = g.nv
    assert nvgpr <= 256, nvgpr

    e(f"s_cmp_ge_u32 s2, {NWG}")
    e("s_cbranch_scc1 L_end")
    e(f"s_load_dwordx16 s[4:19], s[0:1], 0")
    stamp(True); stamp()
    e(f"s_and_b32 s{sJ}, s2, 7")
    e(f"s_lshr_b32 s{sT}, s2, 3")
    e(f"s_mul_i32 s{sV}, s{sJ}, 29")
    e(f"s_min_u32 s{sTMP}, s{sJ}, 2")
    e(f"s_add_u32 s{sV}, s{sV}, s{sTMP}")
    e(f"s_add_u32 s{sV}, s{sV}, s{sT}")
    e(f"s_mul_i32 s{sMB}, s{sV}, 7282")
    e(f"s_lshr_b32 s{sMB}, s{sMB}, 16")
    e(f"s_mul_i32 s{sTMP}, s{sMB}, 9")
    e(f"s_sub_u32 s{sNS}, s{sV}, s{sTMP}")
    e(f"s_cmp_ge_u32 s{sMB}, 13")
    e(f"s_cselect_b32 s{sBB}, 1, 0")
    e(f"s_mul_i32 s{sTMP}, s{sBB}, 13")
    e(f"s_sub_u32 s{sBLK}, s{sMB}, s{sTMP}")
    e(f"s_mul_i32 s{sM0}, s{sBLK}, {MT}")
    e(f"s_lshl_b32 s{sN0}, s{sNS}, 6")
    e(f"v_and_b32 v{vL}, 63, v0")
    e(f"v_lshrrev_b32 v{t0}, 6, v0")
    e(f"v_lshrrev_b32 v{vG}, 4, v{vL}")
    e(f"v_readfirstlane_b32 s{sWV}, v{t0}")
    e(f"v_and_b32 v{vT}, 15, v{vL}")
    e("s_nop 3")
    e(f"s_lshl_b32 s{sWV1K}, s{sWV}, 10")
    e(f"s_lshr_b32 s{sTMP}, s{sWV}, 1")
    e(f"s_mul_i32 s{sP80}, s{sTMP}, 80")
    e(f"s_and_b32 s{sQ}, s{sWV}, 1")
    e(f"s_lshl_b32 s{sTMP}, s{sWV}, 3")
    e(f"s_sub_u32 s{sTMP}, 128, s{sTMP}")
    e(f"s_mul_i32 s{sTAIL}, s{sTMP}, {ROWB}")
    e("s_waitcnt lgkmcnt(0)")
    stamp()
    e(f"s_mul_i32 s{sTMP}, s{sBB}, {BATCHB}")
    e(f"s_add_u32 s{R_X}, s{S_X}, s{sTMP}")
    e(f"s_addc_u32 s{R_X+1}, s{S_X+1}, 0")
    e(f"s_and_b32 s{R_X+1}, s{R_X+1}, 0xffff")
    e(f"s_mov_b32 s{R_X+2}, {BATCHB}")
    e(f"s_mov_b32 s{R_X+3}, 0x00020000")
    e(f"s_add_u32 s{R_OUT}, s{S_OUT}, s{sTMP}")
    e(f"s_addc_u32 s{R_OUT+1}, s{S_OUT+1}, 0")
    e(f"s_and_b32 s{R_OUT+1}, s{R_OUT+1}, 0xffff")
    e(f"s_mov_b32 s{R_OUT+2}, {BATCHB}")
    e(f"s_mov_b32 s{R_OUT+3}, 0x00020000")
    for R, P, nb in ((R_W, S_W, WBYTES), (R_MEAN, S_MEAN, 1152), (R_VAR, S_VAR, 1152), (R_G, S_G, 1152), (R_B, S_B, 1152)):
        e(f"s_mov_b32 s{R}, s{P}")
        e(f"s_and_b32 s{R+1}, s{P+1}, 0xffff")
        e(f"s_mov_b32 s{R+2}, {nb}")
        e(f"s_mov_b32 s{R+3}, 0x00020000")
    e(f"v_lshrrev_b32 v{t0}, 3, v{vL}")
    e(f"v_lshrrev_b32 v{t1}, 4, v{vL}")
    e(f"v_lshlrev_b32 v{t1}, 1, v{t1}")
    e(f"v_and_b32 v{t2}, 7, v{vL}")
    e(f"v_xor_b32 v{t2}, v{t2}, v{t1}")
    e(f"v_lshlrev_b32 v{t2}, 4, v{t2}")
    e(f"s_sub_u32 s{sTMP}, s{sM0}, 1")
    e(f"s_lshl_b32 s{sTMP2}, s{sWV}, 3")
    e(f"s_add_u32 s{sTMP}, s{sTMP}, s{sTMP2}")
    e(f"v_add_u32 v{t3}, s{sTMP}, v{t0}")
    e(f"s_movk_i32 s{sTMP2}, {ROWB}")
    e(f"v_mul_lo_u32 v{vX0}, v{t3}, s{sTMP2}")
    e(f"v_add_u32 v{vX0}, v{vX0}, v{t2}")
    e(f"v_add_u32 v{vX1}, 32, v{t3}")
    e(f"v_mul_lo_u32 v{vX1}, v{vX1}, s{sTMP2}")
    e(f"v_add_u32 v{vX1}, v{vX1}, v{t2}")
    e(f"v_cmp_gt_i32 vcc, 0, v{t3}")
    e(f"v_mov_b32 v{t4}, 0x40000000")
    e("s_nop 1")
    e(f"v_cndmask_b32 v{vX0}, v{vX0}, v{t4}, vcc")
    e(f"s_lshl_b32 s{sTMP}, s{sWV}, 3")
    e(f"v_add_u32 v{t3}, s{sTMP}, v{t0}")
    e(f"v_mul_lo_u32 v{vWO}, v{t3}, s{sTMP2}")
    e(f"v_lshrrev_b32 v{t1}, 4, v{vL}")
    e(f"v_and_b32 v{t1}, 1, v{t1}")
    e(f"v_lshlrev_b32 v{t1}, 1, v{t1}")
    e(f"s_lshl_b32 s{sTMP}, s{sQ}, 2")
    e(f"v_or_b32 v{t1}, s{sTMP}, v{t1}")
    e(f"v_and_b32 v{t2}, 7, v{vL}")
    e(f"v_xor_b32 v{t2}, v{t2}, v{t1}")
    e(f"v_lshlrev_b32 v{t2}, 4, v{t2}")
    e(f"v_add_u32 v{vWO}, v{vWO}, v{t2}")
    e(f"s_lshl_b32 s{sTMP}, s{sN0}, 1")
    e(f"v_add_u32 v{vWO}, s{sTMP}, v{vWO}")

    def dma_x(X, jj):
        slot = X % NX
        if jj < 5:
            e(f"s_add_u32 m0, s{sWV1K}, {slot * XS + jj * 4096}")
            if jj == 0:
                e(f"s_movk_i32 s{sSOFF}, {128 * X}")
                g.vmem(('x', X), f"buffer_load_dwordx4 v{vX0}, s[{R_X}:{R_X+3}], s{sSOFF} offen lds")
            else:
                e(f"s_mov_b32 s{sSOFF}, {(jj - 1) * 32 * ROWB + 128 * X}")
                g.vmem(('x', X), f"buffer_load_dwordx4 v{vX1}, s[{R_X}:{R_X+3}], s{sSOFF} offen lds")
        else:
            e(f"s_mov_b32 m0, {slot * XS + 20 * 1024}")
            e(f"s_add_u32 s{sSOFF}, s{sTAIL}, {128 * X}")
            e(f"s_mov_b64 exec, 0xffff")
            g.vmem(('x', X), f"buffer_load_dwordx4 v{vX1}, s[{R_X}:{R_X+3}], s{sSOFF} offen lds")
            e(f"s_mov_b64 exec, -1")
    def dma_w(s):
        X, hh, k = STEPS[s]
        slot = s % NW
        cc = 2 * X + hh
        e(f"s_add_u32 m0, s{sWV1K}, {WB + slot * 4096}")
        e(f"s_mov_b32 s{sSOFF}, {(k * C + 32 * cc) * ROWB}")
        g.vmem(('w', s), f"buffer_load_dwordx4 v{vWO}, s[{R_W}:{R_W+3}], s{sSOFF} offen lds")

    stamp()
    for jj in range(6): dma_x(0, jj)
    for s in range(0, 6): dma_w(s)
    stamp()
    for jj in range(6): dma_x(1, jj)
    for s in range(6, 12): dma_w(s)
    for jj in range(6): dma_x(2, jj)
    for s in range(12, 24): dma_w(s)

    stamp()
    e(f"s_lshl_b32 s{sTMP}, s{sQ}, 5")
    e(f"s_add_u32 s{sTMP}, s{sTMP}, s{sN0}")
    e(f"v_lshlrev_b32 v{t0}, 2, v{vG}")
    e(f"v_add_u32 v{t0}, s{sTMP}, v{t0}")
    e(f"v_lshlrev_b32 v{vPO}, 1, v{t0}")
    for idx, R in enumerate((R_MEAN, R_VAR, R_G, R_B)):
        g.vmem(('p', idx), f"buffer_load_dwordx2 v[{praw+4*idx}:{praw+4*idx+1}], v{vPO}, s[{R}:{R+3}], 0 offen")
        g.vmem(('p', idx), f"buffer_load_dwordx2 v[{praw+4*idx+2}:{praw+4*idx+3}], v{vPO}, s[{R}:{R+3}], 0 offen offset:32")

    for k in range(3):
        e(f"v_add_u32 v{t0}, s{sP80}, v{vT}")
        if k: e(f"v_add_u32 v{t0}, {k}, v{t0}")
        e(f"v_lshrrev_b32 v{t1}, 1, v{t0}")
        e(f"v_and_b32 v{t1}, 3, v{t1}")
        e(f"v_lshlrev_b32 v{t1}, 1, v{t1}")
        e(f"v_lshlrev_b32 v{t2}, 7, v{t0}")
        for hh in range(2):
            e(f"v_add_u32 v{t3}, {4*hh}, v{vG}")
            e(f"v_xor_b32 v{t3}, v{t3}, v{t1}")
            e(f"v_lshl_add_u32 v{xaddr[(k,hh)]}, v{t3}, 4, v{t2}")
    e(f"v_lshrrev_b32 v{t0}, 2, v{vT}")
    e(f"v_and_b32 v{t1}, 3, v{vT}")
    e(f"v_lshl_add_u32 v{t2}, v{vG}, 3, v{t0}")
    e(f"v_lshlrev_b32 v{t2}, 7, v{t2}")
    e(f"v_and_b32 v{t3}, 1, v{vG}")
    e(f"v_lshlrev_b32 v{t3}, 2, v{t3}")
    e(f"v_lshrrev_b32 v{t4}, 1, v{t0}")
    e(f"v_and_b32 v{t4}, 1, v{t4}")
    e(f"v_lshl_add_u32 v{t3}, v{t4}, 1, v{t3}")
    e(f"v_and_b32 v{t4}, 1, v{t1}")
    e(f"v_lshl_add_u32 v{t2}, v{t4}, 3, v{t2}")
    e(f"v_lshrrev_b32 v{t4}, 1, v{t1}")
    e(f"s_lshl_b32 s{sTMP}, s{sQ}, 2")
    e(f"v_add_u32 v{t4}, s{sTMP}, v{t4}")
    for n in range(2):
        e(f"v_add_u32 v{t5}, {2*n}, v{t4}")
        e(f"v_xor_b32 v{t5}, v{t5}, v{t3}")
        e(f"v_lshl_add_u32 v{t5}, v{t5}, 4, v{t2}")
        for win in range(2):
            e(f"v_add_u32 v{waddr[(win,n)]}, {WB + win * 65536}, v{t5}")
    e(f"s_add_u32 s{sTMP}, s{sM0}, s{sP80}")
    e(f"v_add_u32 v{t0}, s{sTMP}, v{vT}")
    e(f"s_movk_i32 s{sTMP2}, {ROWB}")
    e(f"v_mul_lo_u32 v{vOUT}, v{t0}, s{sTMP2}")
    e(f"v_and_b32 v{t1}, 1, v{vG}")
    e(f"v_lshlrev_b32 v{t1}, 5, v{t1}")
    e(f"v_lshrrev_b32 v{t2}, 1, v{vG}")
    e(f"v_lshl_add_u32 v{t1}, v{t2}, 4, v{t1}")
    e(f"s_lshl_b32 s{sTMP}, s{sQ}, 5")
    e(f"s_add_u32 s{sTMP}, s{sTMP}, s{sN0}")
    e(f"s_lshl_b32 s{sTMP}, s{sTMP}, 1")
    e(f"v_add_u32 v{vOUT}, v{vOUT}, v{t1}")
    e(f"v_add_u32 v{vOUT}, s{sTMP}, v{vOUT}")

    g.wait_vm(lambda t: t[0] == 'p')
    def unpack(dst, src, hi):
        if hi: e(f"v_and_b32 v{dst}, 0xffff0000, v{src}")
        else:  e(f"v_lshlrev_b32 v{dst}, 16, v{src}")
    def bf16r_pair(a, b, tmp):
        e(f"v_cvt_pk_bf16_f32 v{tmp}, v{a}, v{b}")
        e("s_nop 0")
        e(f"v_lshlrev_b32 v{a}, 16, v{tmp}")
        e(f"v_and_b32 v{b}, 0xffff0000, v{tmp}")
    e(f"s_mov_b32 s{sTMP}, 0x3727c5ac")
    for n in range(2):
        for rp in range(2):
            a, b2 = t0, t1
            src = praw + 4 * 1 + 2 * n + rp
            unpack(a, src, 0); unpack(b2, src, 1)
            e(f"v_add_f32 v{a}, s{sTMP}, v{a}")
            e(f"v_add_f32 v{b2}, s{sTMP}, v{b2}")
            bf16r_pair(a, b2, t2)
            e(f"v_sqrt_f32 v{a}, v{a}")
            e(f"v_sqrt_f32 v{b2}, v{b2}")
            e("s_nop 0")
            bf16r_pair(a, b2, t2)
            e(f"v_rcp_f32 v{a}, v{a}")
            e(f"v_rcp_f32 v{b2}, v{b2}")
            e("s_nop 0")
            bf16r_pair(a, b2, t2)
            src = praw + 4 * 2 + 2 * n + rp
            unpack(t3, src, 0); unpack(t4, src, 1)
            e(f"v_mul_f32 v{a}, v{a}, v{t3}")
            e(f"v_mul_f32 v{b2}, v{b2}, v{t4}")
            bf16r_pair(a, b2, t2)
            i0 = n * 4 + 2 * rp
            e(f"v_mov_b32 v{vS+i0}, v{a}")
            e(f"v_mov_b32 v{vS+i0+1}, v{b2}")
            srcm = praw + 4 * 0 + 2 * n + rp
            srcb = praw + 4 * 3 + 2 * n + rp
            unpack(t3, srcm, 0); unpack(t4, srcm, 1)
            unpack(t5, srcb, 0); unpack(t2, srcb, 1)
            e(f"v_fma_f32 v{vSH+i0}, -v{t3}, v{a}, v{t5}")
            e(f"v_fma_f32 v{vSH+i0+1}, -v{t4}, v{b2}, v{t2}")

    def read_frags(s, b):
        X, hh, k = STEPS[s]
        out = []
        for i in range(5):
            out.append(f"ds_read_b128 {vr(XF[(b,i)],4)}, v{xaddr[(k,hh)]} offset:{(X % NX) * XS + i * 2048}")
        slot = s % NW
        win = slot // 16
        for n in range(2):
            for h in range(2):
                out.append(f"ds_read_b64_tr_b16 {vr(WF[(b,n)] + 2*h, 2)}, v{waddr[(win,n)]} offset:{(slot - 16*win) * 4096 + h * 512}")
        return out

    g.wait_vm(lambda t: t == ('x', 0) or (t[0] == 'w' and t[1] < 6))
    e("s_barrier")
    stamp()
    for ins in read_frags(0, 0): e(ins)

    nsteps = len(STEPS)
    pend = []
    for s in range(nsteps):
        X, hh, k = STEPS[s]
        b = s % 2
        if s % 18 == 0 and s > 0: stamp()
        e("s_waitcnt lgkmcnt(0)")
        last_of_chunk = (s % 6 == 5)
        if last_of_chunk and s + 1 < nsteps:
            Xn = X + 1
            if 'nobar' not in EXP:
                if 'nodma' not in EXP or Xn < 3:
                    g.wait_vm(lambda t: t == ('x', Xn) or (t[0] == 'w' and 6 * Xn <= t[1] < 6 * Xn + 6))
                e("s_barrier")
            if 'nodma' not in EXP:
                if X + 3 < NCH:
                    for jj in range(6): pend.append(lambda X=X, jj=jj: dma_x(X + 3, jj))
                for s2 in range(6 * (X + 4), min(6 * (X + 5), nsteps)):
                    pend.append(lambda s2=s2: dma_w(s2))
        fill = []
        if s + 1 < nsteps:
            if 'noread' not in EXP: fill += [("ds", ins) for ins in read_frags(s + 1, 1 - b)]
        mf = []
        for i in range(5):
            for n in range(2):
                acc = ACC[(k, i, n)]
                first = (X == 0 and hh == 0)
                cin = "0" if first else vr(acc, 4)
                mf.append(f"v_mfma_f32_16x16x32_bf16 {vr(acc,4)}, {vr(WF[(b,n)],4)}, {vr(XF[(b,i)],4)}, {cin}")
        fi = 0
        for mi, m in enumerate(mf):
            e(m)
            cnt = 0
            while cnt < 2 and fi < len(fill):
                e(fill[fi][1]); fi += 1; cnt += 1
            if fi >= len(fill) and cnt < 2 and pend:
                pend.pop(0)()
        while fi < len(fill):
            e(fill[fi][1]); fi += 1
    assert not pend

    e("; ---- epilogue")
    stamp()
    e("s_nop 7")
    e("s_nop 1")
    LOG2E = 0x3fb8aa3b
    e(f"s_mov_b32 s{sTMP}, {LOG2E | 0x80000000}")
    tmpbase = XF[(0, 0)]
    for i in range(5):
        tb = tmpbase + (i % 2) * 24
        Z = [tb + j for j in range(8)]
        E_ = [tb + 8 + j for j in range(8)]
        P = tb + 16
        for n in range(2):
            for r in range(4):
                j = n * 4 + r
                a0, a1, a2 = ACC[(0, i, n)] + r, ACC[(1, i, n)] + r, ACC[(2, i, n)] + r
                e(f"v_add_f32 v{Z[j]}, v{a0}, v{a1}")
                e(f"v_add_f32 v{Z[j]}, v{Z[j]}, v{a2}")
        for j in range(8):
            e(f"v_fma_f32 v{Z[j]}, v{Z[j]}, v{vS+j}, v{vSH+j}")
        for j in range(8):
            e(f"v_mul_f32 v{E_[j]}, s{sTMP}, v{Z[j]}")
        for j in range(8):
            e(f"v_exp_f32 v{E_[j]}, v{E_[j]}")
        for j in range(8):
            e(f"v_add_f32 v{E_[j]}, 1.0, v{E_[j]}")
        for j in range(8):
            e(f"v_rcp_f32 v{E_[j]}, v{E_[j]}")
        for j in range(8):
            e(f"v_mul_f32 v{Z[j]}, v{Z[j]}, v{E_[j]}")
        e(f"v_cvt_pk_bf16_f32 v{P+0}, v{Z[0]}, v{Z[1]}")
        e(f"v_cvt_pk_bf16_f32 v{P+1}, v{Z[2]}, v{Z[3]}")
        e(f"v_cvt_pk_bf16_f32 v{P+2}, v{Z[4]}, v{Z[5]}")
        e(f"v_cvt_pk_bf16_f32 v{P+3}, v{Z[6]}, v{Z[7]}")
        e("s_nop 1")
        e(f"v_permlane16_swap_b32 v{P+0}, v{P+2}")
        e(f"v_permlane16_swap_b32 v{P+1}, v{P+3}")
        e(f"s_mov_b32 s{sSOFF}, {i * 16 * ROWB}")
        e("s_nop 0")
        g.vmem(('st', i), f"buffer_store_dwordx4 {vr(P,4)}, v{vOUT}, s[{R_OUT}:{R_OUT+3}], s{sSOFF} offen")
    if STAMPS:
        stamp(); stamp(True)
        e("s_load_dwordx2 s[4:5], s[0:1], 64")
        e("s_waitcnt lgkmcnt(0)")
        e("s_mov_b32 s6, 0x10000000")
        e("s_mov_b32 s7, 0x00020000")
        e(f"s_lshl_b32 s{sTMP}, s2, 2")
        e(f"s_add_u32 s{sTMP}, s{sTMP}, s{sWV}")
        e(f"s_lshl_b32 s{sTMP}, s{sTMP}, 7")
        e(f"v_mov_b32 v{t0}, s{sTMP}")
        for i in range(nst[0]):
            e(f"v_mov_b32 v{t1}, s{ST0+2*i}")
            e(f"buffer_store_dword v{t1}, v{t0}, s[4:7], 0 offen offset:{4*i}")
            e("s_nop 1")
    g.label("L_end")
    e("s_endpgm")

    hdr = f"""; generated by dev/gen.py -- conv1d(K=3)+BN+SiLU, MFMA 16x16x32 bf16, LDS-DMA staging
; @launch grid=({NWG},1,1) block=(256,1,1) lds={LDS_BYTES}
.amdgcn_target "amdgcn-amd-amdhsa--gfx950"
.text
.globl {KNAME}
.p2align 8
.type {KNAME},@function
{KNAME}:
"""
    nva = (nvgpr + 3) // 4 * 4
    ftr = f"""
.section .rodata,"a"
.p2align 6
.amdhsa_kernel {KNAME}
  .amdhsa_next_free_vgpr {nva}
  .amdhsa_next_free_sgpr {nsgpr}
  .amdhsa_accum_offset {nva}
  .amdhsa_group_segment_fixed_size 0
  .amdhsa_kernarg_size 72
  .amdhsa_user_sgpr_count 2
  .amdhsa_user_sgpr_kernarg_segment_ptr 1
  .amdhsa_system_sgpr_workgroup_id_x 1
.end_amdhsa_kernel
"""
    return hdr + "\n".join(g.lines) + "\n" + ftr

if __name__ == "__main__":
    out = sys.argv[1] if len(sys.argv) > 1 else "standalone__batchnorm__prompt.s"
    txt = gen(sys.argv[2] if len(sys.argv) > 2 else None)
    open(out, "w").write(txt)
    print("wrote", out, len(txt.splitlines()), "lines")
```

```python
import sys, os
sys.argv = [sys.argv[0]]
import gen as G
from gen import *
NWAVES = int(os.environ.get('NWAVES', '4'))
MODE = os.environ.get('MODE', 'dma')
def gen_bw():
    g = Gen(); e = g.e
    e(f"s_cmp_ge_u32 s2, {NWG}")
    e("s_cbranch_scc1 L_end")
    e("s_load_dwordx16 s[4:19], s[0:1], 0")
    e("s_memrealtime s[68:69]")
    e("s_memtime s[70:71]")
    e("s_and_b32 s48, s2, 7"); e("s_lshr_b32 s49, s2, 3"); e("s_mul_i32 s50, s48, 29"); e("s_min_u32 s58, s48, 2")
    e("s_add_u32 s50, s50, s58"); e("s_add_u32 s50, s50, s49"); e("s_mul_i32 s51, s50, 7282"); e("s_lshr_b32 s51, s51, 16")
    e("s_mul_i32 s58, s51, 9"); e("s_sub_u32 s52, s50, s58"); e("s_cmp_ge_u32 s51, 13"); e("s_cselect_b32 s53, 1, 0")
    e("s_mul_i32 s58, s53, 13"); e("s_sub_u32 s54, s51, s58"); e(f"s_mul_i32 s55, s54, {MT}"); e("s_lshl_b32 s56, s52, 6")
    e("v_and_b32 v1, 63, v0"); e("v_lshrrev_b32 v2, 6, v0"); e("s_nop 0"); e("v_readfirstlane_b32 s57, v2"); e("s_nop 3")
    e("s_waitcnt lgkmcnt(0)")
    e(f"s_mul_i32 s58, s53, {BATCHB}"); e("s_add_u32 s20, s4, s58"); e("s_addc_u32 s21, s5, 0"); e("s_and_b32 s21, s21, 0xffff")
    e(f"s_mov_b32 s22, {BATCHB}"); e("s_mov_b32 s23, 0x00020000")
    e("s_mov_b32 s24, s6"); e("s_and_b32 s25, s7, 0xffff"); e(f"s_mov_b32 s26, {WBYTES}"); e("s_mov_b32 s27, 0x00020000")
    e("v_lshrrev_b32 v3, 3, v1"); e("v_and_b32 v4, 7, v1"); e("v_lshlrev_b32 v4, 4, v4")
    e("s_lshl_b32 s58, s57, 3"); e("s_add_u32 s58, s58, s55"); e("v_add_u32 v3, s58, v3")
    e(f"s_movk_i32 s59, {ROWB}"); e("v_mul_lo_u32 v5, v3, s59"); e("v_add_u32 v5, v5, v4")
    e("v_lshrrev_b32 v3, 3, v1"); e("s_lshl_b32 s58, s57, 3"); e("v_add_u32 v3, s58, v3"); e("v_mul_lo_u32 v6, v3, s59"); e("v_add_u32 v6, v6, v4")
    e("s_lshl_b32 s58, s56, 1"); e("v_add_u32 v6, s58, v6")
    e("s_lshl_b32 s60, s57, 10")
    per = max(1, 4 // NWAVES) if NWAVES <= 4 else 1
    cnt = 0
    def ld(voff, srd, soff, ldsoff):
        nonlocal cnt
        if MODE == 'dma':
            e(f"s_add_u32 m0, s60, {ldsoff}")
            e(f"s_mov_b32 s62, {soff}")
            e(f"buffer_load_dwordx4 v{voff}, s[{srd}:{srd+3}], s62 offen lds")
        else:
            e(f"s_mov_b32 s62, {soff}")
            e(f"buffer_load_dwordx4 v[{8+4*(cnt%8)}:{8+4*(cnt%8)+3}], v{voff}, s[{srd}:{srd+3}], s62 offen")
        cnt += 1
    for X in range(NCH):
        for jj in range(5):
            ld(5, 20, jj * 32 * ROWB + 128 * X, (X % NX) * XS + jj * 4096)
        for s in range(6 * X, 6 * X + 6):
            _, hh, k = STEPS[s]
            ld(6, 24, (k * C + 32 * (2 * X + hh)) * ROWB, WB + (s % NW) * 4096)
    e("s_waitcnt vmcnt(0)")
    e("s_memtime s[72:73]")
    e("s_memrealtime s[74:75]")
    e("s_load_dwordx2 s[4:5], s[0:1], 64")
    e("s_waitcnt lgkmcnt(0)")
    e("s_mov_b32 s6, 0x10000000"); e("s_mov_b32 s7, 0x00020000")
    e("s_lshl_b32 s58, s2, 2"); e("s_add_u32 s58, s58, s57"); e("s_lshl_b32 s58, s58, 7"); e("v_mov_b32 v2, s58")
    for i, s in enumerate((68, 70, 72, 74)):
        e(f"v_mov_b32 v3, s{s}"); e(f"buffer_store_dword v3, v2, s[4:7], 0 offen offset:{4*i}"); e("s_nop 1")
    g.label("L_end"); e("s_endpgm")
    hdr = f"""; bw probe
; @launch grid=({NWG},1,1) block=({64*NWAVES},1,1) lds={LDS_BYTES}
.amdgcn_target "amdgcn-amd-amdhsa--gfx950"
.text
.globl {KNAME}
.p2align 8
.type {KNAME},@function
{KNAME}:
"""
    ftr = f"""
.section .rodata,"a"
.p2align 6
.amdhsa_kernel {KNAME}
  .amdhsa_next_free_vgpr 64
  .amdhsa_next_free_sgpr 80
  .amdhsa_accum_offset 64
  .amdhsa_group_segment_fixed_size 0
  .amdhsa_kernarg_size 72
  .amdhsa_user_sgpr_count 2
  .amdhsa_user_sgpr_kernarg_segment_ptr 1
  .amdhsa_system_sgpr_workgroup_id_x 1
.end_amdhsa_kernel
"""
    return hdr + "\n".join(g.lines) + "\n" + ftr
open(os.environ['OUT'], "w").write(gen_bw())
```

```python
import sys

KNAME = "standalone__batchnorm__prompt_kernel"
S = 2048; C = 576; ROWB = 1152
BATCHB = S * ROWB
WBYTES = 3 * C * C * 2
MT = 160; NBLK = 13; NMB = 26; NNS = 9; NWG = NMB * NNS
XS = 168 * 128
NX = 3
WB = NX * XS
NW = 24
LDS_BYTES = WB + NW * 4096
NCH = 9
STEPS = [(X, hh, k) for X in range(NCH) for hh in range(2) for k in range(3)]

class Gen:
    def __init__(self):
        self.lines = []
        self.vm = []
        self.nv = 0
        self.ns = 0
    def e(self, s):
        self.lines.append("    " + s)
    def c(self, s):
        self.lines.append("    ; " + s)
    def label(self, s):
        self.lines.append(s + ":")
    def valloc(self, n, align=1):
        self.nv = (self.nv + align - 1) // align * align
        r = self.nv; self.nv += n; return r
    def vmem(self, tag, text):
        self.e(text); self.vm.append(tag)
    def wait_vm(self, need, extra=""):
        last = -1
        for i, t in enumerate(self.vm):
            if need(t): last = i
        assert last >= 0
        n = len(self.vm) - 1 - last
        assert n <= 63
        self.e(f"s_waitcnt vmcnt({n}){extra}")

def vr(a, n=1):
    return f"v{a}" if n == 1 else f"v[{a}:{a+n-1}]"
def sr(a, n=1):
    return f"s{a}" if n == 1 else f"s[{a}:{a+n-1}]"

import os
EXP = os.environ.get('EXP', '')
def gen(dbg=None):
    g = Gen()
    e = g.e
    STAMPS = dbg == 'stamps'
    ATOM = dbg == 'atom'
    nst = [0]
    ST0 = 68
    def stamp(real=False):
        if not STAMPS: return
        i = nst[0]; nst[0] += 1
        assert ST0 + 2*i + 1 < 102
        e(f"s_memrealtime s[{ST0+2*i}:{ST0+2*i+1}]" if real else f"s_memtime s[{ST0+2*i}:{ST0+2*i+1}]")
    S_X, S_W, S_MEAN, S_VAR, S_G, S_B, S_OUT = 4, 6, 8, 10, 12, 14, 16
    R_X, R_W, R_OUT, R_MEAN, R_VAR, R_G, R_B = 20, 24, 28, 32, 36, 40, 44
    sJ, sT, sV, sMB, sNS, sBB, sBLK, sM0, sN0, sWV, sTMP, sTMP2 = 48, 49, 50, 51, 52, 53, 54, 55, 56, 57, 58, 59
    sWV1K, sTAIL, sSOFF, sP80, sQ = 60, 61, 62, 63, 64
    sEX = 66
    nsgpr = 102 if STAMPS else (80 if ATOM else 68)
    g.valloc(1)
    vL = g.valloc(1); vG = g.valloc(1); vT = g.valloc(1)
    t0 = g.valloc(1); t1 = g.valloc(1); t2 = g.valloc(1); t3 = g.valloc(1); t4 = g.valloc(1); t5 = g.valloc(1)
    vX0 = g.valloc(1); vX1 = g.valloc(1); vWO = g.valloc(1); vOUT = g.valloc(1); vPO = g.valloc(1)
    xaddr = {(k, hh): g.valloc(1) for k in range(3) for hh in range(2)}
    waddr = {(win, n): g.valloc(1) for win in range(2) for n in range(2)}
    praw = g.valloc(16, 2)
    vS = g.valloc(8); vSH = g.valloc(8)
    ACC = {}
    for k in range(3):
        for i in range(5):
            for n in range(2):
                ACC[(k, i, n)] = g.valloc(4, 4)
    XF = {(b, i): g.valloc(4, 4) for b in range(2) for i in range(5)}
    WF = {(b, n): g.valloc(4, 4) for b in range(2) for n in range(2)}
    nvgpr = g.nv
    assert nvgpr <= 256, nvgpr

    e(f"s_cmp_ge_u32 s2, {NWG}")
    e("s_cbranch_scc1 L_end")
    e(f"s_load_dwordx16 s[4:19], s[0:1], 0")
    stamp(True); stamp()
    if ATOM:
        e("s_memrealtime s[70:71]"); e("s_memtime s[72:73]")
    e(f"s_and_b32 s{sJ}, s2, 7")
    e(f"s_lshr_b32 s{sT}, s2, 3")
    e(f"s_mul_i32 s{sV}, s{sJ}, 29")
    e(f"s_min_u32 s{sTMP}, s{sJ}, 2")
    e(f"s_add_u32 s{sV}, s{sV}, s{sTMP}")
    e(f"s_add_u32 s{sV}, s{sV}, s{sT}")
    e(f"s_mul_i32 s{sMB}, s{sV}, 7282")
    e(f"s_lshr_b32 s{sMB}, s{sMB}, 16")
    e(f"s_mul_i32 s{sTMP}, s{sMB}, 9")
    e(f"s_sub_u32 s{sNS}, s{sV}, s{sTMP}")
    e(f"s_cmp_ge_u32 s{sMB}, 13")
    e(f"s_cselect_b32 s{sBB}, 1, 0")
    e(f"s_mul_i32 s{sTMP}, s{sBB}, 13")
    e(f"s_sub_u32 s{sBLK}, s{sMB}, s{sTMP}")
    e(f"s_mul_i32 s{sM0}, s{sBLK}, {MT}")
    e(f"s_lshl_b32 s{sN0}, s{sNS}, 6")
    e(f"v_and_b32 v{vL}, 63, v0")
    e(f"v_lshrrev_b32 v{t0}, 6, v0")
    e(f"v_lshrrev_b32 v{vG}, 4, v{vL}")
    e(f"v_readfirstlane_b32 s{sWV}, v{t0}")
    e(f"v_and_b32 v{vT}, 15, v{vL}")
    e("s_nop 3")
    e(f"s_lshl_b32 s{sWV1K}, s{sWV}, 10")
    e(f"s_lshr_b32 s{sTMP}, s{sWV}, 1")
    e(f"s_mul_i32 s{sP80}, s{sTMP}, 80")
    e(f"s_and_b32 s{sQ}, s{sWV}, 1")
    e(f"s_lshl_b32 s{sTMP}, s{sWV}, 3")
    e(f"s_sub_u32 s{sTMP}, 128, s{sTMP}")
    e(f"s_mul_i32 s{sTAIL}, s{sTMP}, {ROWB}")
    e("s_waitcnt lgkmcnt(0)")
    stamp()
    e(f"s_mul_i32 s{sTMP}, s{sBB}, {BATCHB}")
    e(f"s_add_u32 s{R_X}, s{S_X}, s{sTMP}")
    e(f"s_addc_u32 s{R_X+1}, s{S_X+1}, 0")
    e(f"s_and_b32 s{R_X+1}, s{R_X+1}, 0xffff")
    e(f"s_mov_b32 s{R_X+2}, {BATCHB}")
    e(f"s_mov_b32 s{R_X+3}, 0x00020000")
    e(f"s_add_u32 s{R_OUT}, s{S_OUT}, s{sTMP}")
    e(f"s_addc_u32 s{R_OUT+1}, s{S_OUT+1}, 0")
    e(f"s_and_b32 s{R_OUT+1}, s{R_OUT+1}, 0xffff")
    e(f"s_mov_b32 s{R_OUT+2}, {BATCHB}")
    e(f"s_mov_b32 s{R_OUT+3}, 0x00020000")
    for R, P, nb in ((R_W, S_W, WBYTES), (R_MEAN, S_MEAN, 1152), (R_VAR, S_VAR, 1152), (R_G, S_G, 1152), (R_B, S_B, 1152)):
        e(f"s_mov_b32 s{R}, s{P}")
        e(f"s_and_b32 s{R+1}, s{P+1}, 0xffff")
        e(f"s_mov_b32 s{R+2}, {nb}")
        e(f"s_mov_b32 s{R+3}, 0x00020000")
    e(f"v_lshrrev_b32 v{t0}, 3, v{vL}")
    e(f"v_lshrrev_b32 v{t1}, 4, v{vL}")
    e(f"v_lshlrev_b32 v{t1}, 1, v{t1}")
    e(f"v_and_b32 v{t2}, 7, v{vL}")
    e(f"v_xor_b32 v{t2}, v{t2}, v{t1}")
    e(f"v_lshlrev_b32 v{t2}, 4, v{t2}")
    e(f"s_sub_u32 s{sTMP}, s{sM0}, 1")
    e(f"s_lshl_b32 s{sTMP2}, s{sWV}, 3")
    e(f"s_add_u32 s{sTMP}, s{sTMP}, s{sTMP2}")
    e(f"v_add_u32 v{t3}, s{sTMP}, v{t0}")
    e(f"s_movk_i32 s{sTMP2}, {ROWB}")
    e(f"v_mul_lo_u32 v{vX0}, v{t3}, s{sTMP2}")
    e(f"v_add_u32 v{vX0}, v{vX0}, v{t2}")
    e(f"v_add_u32 v{vX1}, 32, v{t3}")
    e(f"v_mul_lo_u32 v{vX1}, v{vX1}, s{sTMP2}")
    e(f"v_add_u32 v{vX1}, v{vX1}, v{t2}")
    e(f"v_cmp_gt_i32 vcc, 0, v{t3}")
    e(f"v_mov_b32 v{t4}, 0x40000000")
    e("s_nop 1")
    e(f"v_cndmask_b32 v{vX0}, v{vX0}, v{t4}, vcc")
    e(f"s_lshl_b32 s{sTMP}, s{sWV}, 3")
    e(f"v_add_u32 v{t3}, s{sTMP}, v{t0}")
    e(f"v_mul_lo_u32 v{vWO}, v{t3}, s{sTMP2}")
    e(f"v_lshrrev_b32 v{t1}, 4, v{vL}")
    e(f"v_and_b32 v{t1}, 1, v{t1}")
    e(f"v_lshlrev_b32 v{t1}, 1, v{t1}")
    e(f"s_lshl_b32 s{sTMP}, s{sQ}, 2")
    e(f"v_or_b32 v{t1}, s{sTMP}, v{t1}")
    e(f"v_and_b32 v{t2}, 7, v{vL}")
    e(f"v_xor_b32 v{t2}, v{t2}, v{t1}")
    e(f"v_lshlrev_b32 v{t2}, 4, v{t2}")
    e(f"v_add_u32 v{vWO}, v{vWO}, v{t2}")
    e(f"s_lshl_b32 s{sTMP}, s{sN0}, 1")
    e(f"v_add_u32 v{vWO}, s{sTMP}, v{vWO}")

    def dma_x(X, jj):
        slot = X % NX
        if jj < 5:
            e(f"s_add_u32 m0, s{sWV1K}, {slot * XS + jj * 4096}")
            if jj == 0:
                e(f"s_movk_i32 s{sSOFF}, {128 * X}")
                g.vmem(('x', X), f"buffer_load_dwordx4 v{vX0}, s[{R_X}:{R_X+3}], s{sSOFF} offen lds")
            else:
                e(f"s_mov_b32 s{sSOFF}, {(jj - 1) * 32 * ROWB + 128 * X}")
                g.vmem(('x', X), f"buffer_load_dwordx4 v{vX1}, s[{R_X}:{R_X+3}], s{sSOFF} offen lds")
        else:
            e(f"s_mov_b32 m0, {slot * XS + 20 * 1024}")
            e(f"s_add_u32 s{sSOFF}, s{sTAIL}, {128 * X}")
            e(f"s_mov_b64 exec, 0xffff")
            g.vmem(('x', X), f"buffer_load_dwordx4 v{vX1}, s[{R_X}:{R_X+3}], s{sSOFF} offen lds")
            e(f"s_mov_b64 exec, -1")
    def dma_w(s):
        X, hh, k = STEPS[s]
        slot = s % NW
        cc = 2 * X + hh
        e(f"s_add_u32 m0, s{sWV1K}, {WB + slot * 4096}")
        e(f"s_mov_b32 s{sSOFF}, {(k * C + 32 * cc) * ROWB}")
        g.vmem(('w', s), f"buffer_load_dwordx4 v{vWO}, s[{R_W}:{R_W+3}], s{sSOFF} offen lds")

    stamp()
    for jj in range(6): dma_x(0, jj)
    for s in range(0, 6): dma_w(s)
    stamp()
    for jj in range(6): dma_x(1, jj)
    for s in range(6, 12): dma_w(s)
    for jj in range(6): dma_x(2, jj)
    for s in range(12, 24): dma_w(s)

    stamp()
    e(f"s_lshl_b32 s{sTMP}, s{sQ}, 5")
    e(f"s_add_u32 s{sTMP}, s{sTMP}, s{sN0}")
    e(f"v_lshlrev_b32 v{t0}, 2, v{vG}")
    e(f"v_add_u32 v{t0}, s{sTMP}, v{t0}")
    e(f"v_lshlrev_b32 v{vPO}, 1, v{t0}")
    for idx, R in enumerate((R_MEAN, R_VAR, R_G, R_B)):
        g.vmem(('p', idx), f"buffer_load_dwordx2 v[{praw+4*idx}:{praw+4*idx+1}], v{vPO}, s[{R}:{R+3}], 0 offen")
        g.vmem(('p', idx), f"buffer_load_dwordx2 v[{praw+4*idx+2}:{praw+4*idx+3}], v{vPO}, s[{R}:{R+3}], 0 offen offset:32")

    for k in range(3):
        e(f"v_add_u32 v{t0}, s{sP80}, v{vT}")
        if k: e(f"v_add_u32 v{t0}, {k}, v{t0}")
        e(f"v_lshrrev_b32 v{t1}, 1, v{t0}")
        e(f"v_and_b32 v{t1}, 3, v{t1}")
        e(f"v_lshlrev_b32 v{t1}, 1, v{t1}")
        e(f"v_lshlrev_b32 v{t2}, 7, v{t0}")
        for hh in range(2):
            e(f"v_add_u32 v{t3}, {4*hh}, v{vG}")
            e(f"v_xor_b32 v{t3}, v{t3}, v{t1}")
            e(f"v_lshl_add_u32 v{xaddr[(k,hh)]}, v{t3}, 4, v{t2}")
    e(f"v_lshrrev_b32 v{t0}, 2, v{vT}")
    e(f"v_and_b32 v{t1}, 3, v{vT}")
    e(f"v_lshl_add_u32 v{t2}, v{vG}, 3, v{t0}")
    e(f"v_lshlrev_b32 v{t2}, 7, v{t2}")
    e(f"v_and_b32 v{t3}, 1, v{vG}")
    e(f"v_lshlrev_b32 v{t3}, 2, v{t3}")
    e(f"v_lshrrev_b32 v{t4}, 1, v{t0}")
    e(f"v_and_b32 v{t4}, 1, v{t4}")
    e(f"v_lshl_add_u32 v{t3}, v{t4}, 1, v{t3}")
    e(f"v_and_b32 v{t4}, 1, v{t1}")
    e(f"v_lshl_add_u32 v{t2}, v{t4}, 3, v{t2}")
    e(f"v_lshrrev_b32 v{t4}, 1, v{t1}")
    e(f"s_lshl_b32 s{sTMP}, s{sQ}, 2")
    e(f"v_add_u32 v{t4}, s{sTMP}, v{t4}")
    for n in range(2):
        e(f"v_add_u32 v{t5}, {2*n}, v{t4}")
        e(f"v_xor_b32 v{t5}, v{t5}, v{t3}")
        e(f"v_lshl_add_u32 v{t5}, v{t5}, 4, v{t2}")
        for win in range(2):
            e(f"v_add_u32 v{waddr[(win,n)]}, {WB + win * 65536}, v{t5}")
    e(f"s_add_u32 s{sTMP}, s{sM0}, s{sP80}")
    e(f"v_add_u32 v{t0}, s{sTMP}, v{vT}")
    e(f"s_movk_i32 s{sTMP2}, {ROWB}")
    e(f"v_mul_lo_u32 v{vOUT}, v{t0}, s{sTMP2}")
    e(f"v_and_b32 v{t1}, 1, v{vG}")
    e(f"v_lshlrev_b32 v{t1}, 5, v{t1}")
    e(f"v_lshrrev_b32 v{t2}, 1, v{vG}")
    e(f"v_lshl_add_u32 v{t1}, v{t2}, 4, v{t1}")
    e(f"s_lshl_b32 s{sTMP}, s{sQ}, 5")
    e(f"s_add_u32 s{sTMP}, s{sTMP}, s{sN0}")
    e(f"s_lshl_b32 s{sTMP}, s{sTMP}, 1")
    e(f"v_add_u32 v{vOUT}, v{vOUT}, v{t1}")
    e(f"v_add_u32 v{vOUT}, s{sTMP}, v{vOUT}")

    g.wait_vm(lambda t: t[0] == 'p')
    def unpack(dst, src, hi):
        if hi: e(f"v_and_b32 v{dst}, 0xffff0000, v{src}")
        else:  e(f"v_lshlrev_b32 v{dst}, 16, v{src}")
    def bf16r_pair(a, b, tmp):
        e(f"v_cvt_pk_bf16_f32 v{tmp}, v{a}, v{b}")
        e("s_nop 0")
        e(f"v_lshlrev_b32 v{a}, 16, v{tmp}")
        e(f"v_and_b32 v{b}, 0xffff0000, v{tmp}")
    e(f"s_mov_b32 s{sTMP}, 0x3727c5ac")
    for n in range(2):
        for rp in range(2):
            a, b2 = t0, t1
            src = praw + 4 * 1 + 2 * n + rp
            unpack(a, src, 0); unpack(b2, src, 1)
            e(f"v_add_f32 v{a}, s{sTMP}, v{a}")
            e(f"v_add_f32 v{b2}, s{sTMP}, v{b2}")
            bf16r_pair(a, b2, t2)
            e(f"v_sqrt_f32 v{a}, v{a}")
            e(f"v_sqrt_f32 v{b2}, v{b2}")
            e("s_nop 0")
            bf16r_pair(a, b2, t2)
            e(f"v_rcp_f32 v{a}, v{a}")
            e(f"v_rcp_f32 v{b2}, v{b2}")
            e("s_nop 0")
            bf16r_pair(a, b2, t2)
            src = praw + 4 * 2 + 2 * n + rp
            unpack(t3, src, 0); unpack(t4, src, 1)
            e(f"v_mul_f32 v{a}, v{a}, v{t3}")
            e(f"v_mul_f32 v{b2}, v{b2}, v{t4}")
            bf16r_pair(a, b2, t2)
            i0 = n * 4 + 2 * rp
            e(f"v_mov_b32 v{vS+i0}, v{a}")
            e(f"v_mov_b32 v{vS+i0+1}, v{b2}")
            srcm = praw + 4 * 0 + 2 * n + rp
            srcb = praw + 4 * 3 + 2 * n + rp
            unpack(t3, srcm, 0); unpack(t4, srcm, 1)
            unpack(t5, srcb, 0); unpack(t2, srcb, 1)
            e(f"v_fma_f32 v{vSH+i0}, -v{t3}, v{a}, v{t5}")
            e(f"v_fma_f32 v{vSH+i0+1}, -v{t4}, v{b2}, v{t2}")

    def read_frags(s, b):
        X, hh, k = STEPS[s]
        out = []
        for i in range(5):
            out.append(f"ds_read_b128 {vr(XF[(b,i)],4)}, v{xaddr[(k,hh)]} offset:{(X % NX) * XS + i * 2048}")
        slot = s % NW
        win = slot // 16
        for n in range(2):
            for h in range(2):
                out.append(f"ds_read_b64_tr_b16 {vr(WF[(b,n)] + 2*h, 2)}, v{waddr[(win,n)]} offset:{(slot - 16*win) * 4096 + h * 512}")
        return out

    g.wait_vm(lambda t: t == ('x', 0) or (t[0] == 'w' and t[1] < 6))
    e("s_barrier")
    stamp()
    for ins in read_frags(0, 0): e(ins)

    nsteps = len(STEPS)
    pend = []
    for s in range(nsteps):
        X, hh, k = STEPS[s]
        b = s % 2
        if s % 18 == 0 and s > 0: stamp()
        e("s_waitcnt lgkmcnt(0)")
        last_of_chunk = (s % 6 == 5)
        if last_of_chunk and s + 1 < nsteps:
            Xn = X + 1
            if 'nobar' not in EXP:
                if 'nodma' not in EXP or Xn < 3:
                    g.wait_vm(lambda t: t == ('x', Xn) or (t[0] == 'w' and 6 * Xn <= t[1] < 6 * Xn + 6))
                e("s_barrier")
            if 'nodma' not in EXP:
                if X + 3 < NCH:
                    for jj in range(6): pend.append(lambda X=X, jj=jj: dma_x(X + 3, jj))
                for s2 in range(6 * (X + 4), min(6 * (X + 5), nsteps)):
                    pend.append(lambda s2=s2: dma_w(s2))
        fill = []
        if s + 1 < nsteps:
            if 'noread' not in EXP: fill += [("ds", ins) for ins in read_frags(s + 1, 1 - b)]
        mf = []
        for i in range(5):
            for n in range(2):
                acc = ACC[(k, i, n)]
                first = (X == 0 and hh == 0)
                cin = "0" if first else vr(acc, 4)
                mf.append(f"v_mfma_f32_16x16x32_bf16 {vr(acc,4)}, {vr(WF[(b,n)],4)}, {vr(XF[(b,i)],4)}, {cin}")
        fi = 0
        for mi, m in enumerate(mf):
            e(m)
            cnt = 0
            while cnt < 2 and fi < len(fill):
                e(fill[fi][1]); fi += 1; cnt += 1
            if fi >= len(fill) and cnt < 2 and pend:
                pend.pop(0)()
        while fi < len(fill):
            e(fill[fi][1]); fi += 1
    assert not pend

    e("; ---- epilogue")
    stamp()
    e("s_nop 7")
    e("s_nop 1")
    LOG2E = 0x3fb8aa3b
    e(f"s_mov_b32 s{sTMP}, {LOG2E | 0x80000000}")
    tmpbase = XF[(0, 0)]
    for i in range(5):
        tb = tmpbase + (i % 2) * 24
        Z = [tb + j for j in range(8)]
        E_ = [tb + 8 + j for j in range(8)]
        P = tb + 16
        for n in range(2):
            for r in range(4):
                j = n * 4 + r
                a0, a1, a2 = ACC[(0, i, n)] + r, ACC[(1, i, n)] + r, ACC[(2, i, n)] + r
                e(f"v_add_f32 v{Z[j]}, v{a0}, v{a1}")
                e(f"v_add_f32 v{Z[j]}, v{Z[j]}, v{a2}")
        for j in range(8):
            e(f"v_fma_f32 v{Z[j]}, v{Z[j]}, v{vS+j}, v{vSH+j}")
        for j in range(8):
            e(f"v_mul_f32 v{E_[j]}, s{sTMP}, v{Z[j]}")
        for j in range(8):
            e(f"v_exp_f32 v{E_[j]}, v{E_[j]}")
        for j in range(8):
            e(f"v_add_f32 v{E_[j]}, 1.0, v{E_[j]}")
        for j in range(8):
            e(f"v_rcp_f32 v{E_[j]}, v{E_[j]}")
        for j in range(8):
            e(f"v_mul_f32 v{Z[j]}, v{Z[j]}, v{E_[j]}")
        e(f"v_cvt_pk_bf16_f32 v{P+0}, v{Z[0]}, v{Z[1]}")
        e(f"v_cvt_pk_bf16_f32 v{P+1}, v{Z[2]}, v{Z[3]}")
        e(f"v_cvt_pk_bf16_f32 v{P+2}, v{Z[4]}, v{Z[5]}")
        e(f"v_cvt_pk_bf16_f32 v{P+3}, v{Z[6]}, v{Z[7]}")
        e("s_nop 1")
        e(f"v_permlane16_swap_b32 v{P+0}, v{P+2}")
        e(f"v_permlane16_swap_b32 v{P+1}, v{P+3}")
        e(f"s_mov_b32 s{sSOFF}, {i * 16 * ROWB}")
        e("s_nop 0")
        g.vmem(('st', i), f"buffer_store_dwordx4 {vr(P,4)}, v{vOUT}, s[{R_OUT}:{R_OUT+3}], s{sSOFF} offen")
    if STAMPS:
        stamp(); stamp(True)
        e("s_load_dwordx2 s[4:5], s[0:1], 64")
        e("s_waitcnt lgkmcnt(0)")
        e("s_mov_b32 s6, 0x10000000")
        e("s_mov_b32 s7, 0x00020000")
        e(f"s_lshl_b32 s{sTMP}, s2, 2")
        e(f"s_add_u32 s{sTMP}, s{sTMP}, s{sWV}")
        e(f"s_lshl_b32 s{sTMP}, s{sTMP}, 7")
        e(f"v_mov_b32 v{t0}, s{sTMP}")
        for i in range(nst[0]):
            e(f"v_mov_b32 v{t1}, s{ST0+2*i}")
            e(f"buffer_store_dword v{t1}, v{t0}, s[4:7], 0 offen offset:{4*i}")
            e("s_nop 1")
    if ATOM:
        e("s_memtime s[74:75]"); e("s_memrealtime s[76:77]")
        e("s_load_dwordx2 s[4:5], s[0:1], 56")
        e("s_waitcnt lgkmcnt(0)")
        e("s_and_b32 s5, s5, 0xffff")
        e("s_mov_b32 s6, 256")
        e("s_mov_b32 s7, 0x00020000")
        e("s_mov_b64 exec, 1")
        e("s_not_b32 s78, s70")
        e("s_sub_u32 s79, s76, s70")
        e("s_sub_u32 s75, s74, s72")
        e(f"v_mov_b32 v{t0}, 0")
        e(f"v_mov_b32 v{t1}, s78")
        e(f"v_mov_b32 v{t2}, s76")
        e(f"v_mov_b32 v{t3}, s75")
        e(f"v_mov_b32 v{t4}, s79")
        e(f"buffer_atomic_umax v{t1}, v{t0}, s[4:7], 0 offen")
        e(f"buffer_atomic_umax v{t2}, v{t0}, s[4:7], 0 offen offset:4")
        e(f"buffer_atomic_umax v{t3}, v{t0}, s[4:7], 0 offen offset:8")
        e(f"buffer_atomic_umax v{t4}, v{t0}, s[4:7], 0 offen offset:12")
        e(f"buffer_atomic_add v{t4}, v{t0}, s[4:7], 0 offen offset:16")
        e(f"buffer_atomic_add v{t3}, v{t0}, s[4:7], 0 offen offset:20")
        e(f"v_mov_b32 v{t1}, s70")
        e(f"buffer_atomic_umax v{t1}, v{t0}, s[4:7], 0 offen offset:24")
        e("s_not_b32 s78, s76")
        e(f"v_mov_b32 v{t2}, s78")
        e(f"buffer_atomic_umax v{t2}, v{t0}, s[4:7], 0 offen offset:28")
    g.label("L_end")
    e("s_endpgm")

    hdr = f"""; generated by dev/gen.py -- conv1d(K=3)+BN+SiLU, MFMA 16x16x32 bf16, LDS-DMA staging
; @launch grid=({NWG},1,1) block=(256,1,1) lds={LDS_BYTES}
.amdgcn_target "amdgcn-amd-amdhsa--gfx950"
.text
.globl {KNAME}
.p2align 8
.type {KNAME},@function
{KNAME}:
"""
    nva = (nvgpr + 3) // 4 * 4
    ftr = f"""
.section .rodata,"a"
.p2align 6
.amdhsa_kernel {KNAME}
  .amdhsa_next_free_vgpr {nva}
  .amdhsa_next_free_sgpr {nsgpr}
  .amdhsa_accum_offset {nva}
  .amdhsa_group_segment_fixed_size 0
  .amdhsa_kernarg_size 72
  .amdhsa_user_sgpr_count 2
  .amdhsa_user_sgpr_kernarg_segment_ptr 1
  .amdhsa_system_sgpr_workgroup_id_x 1
.end_amdhsa_kernel
"""
    return hdr + "\n".join(g.lines) + "\n" + ftr

if __name__ == "__main__":
    out = sys.argv[1] if len(sys.argv) > 1 else "standalone__batchnorm__prompt.s"
    txt = gen(sys.argv[2] if len(sys.argv) > 2 else None)
    open(out, "w").write(txt)
    print("wrote", out, len(txt.splitlines()), "lines")
```

```python
import sys

KNAME = "standalone__batchnorm__prompt_kernel"
S = 2048; C = 576; ROWB = 1152
BATCHB = S * ROWB
WBYTES = 3 * C * C * 2
MT = 160; NBLK = 13; NMB = 26; NNS = 9; NWG = NMB * NNS
XS = 168 * 128
NX = 3
WB = NX * XS
NW = 24
LDS_BYTES = WB + NW * 4096
NCH = 9
STEPS = [(X, hh, k) for X in range(NCH) for hh in range(2) for k in range(3)]

class Gen:
    def __init__(self):
        self.lines = []
        self.vm = []
        self.nv = 0
        self.ns = 0
    def e(self, s):
        self.lines.append("    " + s)
    def c(self, s):
        self.lines.append("    ; " + s)
    def label(self, s):
        self.lines.append(s + ":")
    def valloc(self, n, align=1):
        self.nv = (self.nv + align - 1) // align * align
        r = self.nv; self.nv += n; return r
    def vmem(self, tag, text):
        self.e(text); self.vm.append(tag)
    def wait_vm(self, need, extra=""):
        last = -1
        for i, t in enumerate(self.vm):
            if need(t): last = i
        assert last >= 0
        n = len(self.vm) - 1 - last
        assert n <= 63
        self.e(f"s_waitcnt vmcnt({n}){extra}")

def vr(a, n=1):
    return f"v{a}" if n == 1 else f"v[{a}:{a+n-1}]"
def sr(a, n=1):
    return f"s{a}" if n == 1 else f"s[{a}:{a+n-1}]"

import os
EXP = os.environ.get('EXP', '')
def gen(dbg=None):
    g = Gen()
    e = g.e
    STAMPS = dbg == 'stamps'
    ATOM = dbg == 'atom'
    nst = [0]
    ST0 = 68
    def stamp(real=False):
        if not STAMPS: return
        i = nst[0]; nst[0] += 1
        assert ST0 + 2*i + 1 < 102
        e(f"s_memrealtime s[{ST0+2*i}:{ST0+2*i+1}]" if real else f"s_memtime s[{ST0+2*i}:{ST0+2*i+1}]")
    S_X, S_W, S_MEAN, S_VAR, S_G, S_B, S_OUT = 4, 6, 8, 10, 12, 14, 16
    R_X, R_W, R_OUT, R_MEAN, R_VAR, R_G, R_B = 20, 24, 28, 32, 36, 40, 44
    sJ, sT, sV, sMB, sNS, sBB, sBLK, sM0, sN0, sWV, sTMP, sTMP2 = 48, 49, 50, 51, 52, 53, 54, 55, 56, 57, 58, 59
    sWV1K, sTAIL, sSOFF, sP80, sQ = 60, 61, 62, 63, 64
    sEX = 66
    nsgpr = 102 if STAMPS else (80 if ATOM else 68)
    g.valloc(1)
    vL = g.valloc(1); vG = g.valloc(1); vT = g.valloc(1)
    t0 = g.valloc(1); t1 = g.valloc(1); t2 = g.valloc(1); t3 = g.valloc(1); t4 = g.valloc(1); t5 = g.valloc(1)
    vX0 = g.valloc(1); vX1 = g.valloc(1); vWO = g.valloc(1); vOUT = g.valloc(1); vPO = g.valloc(1)
    xaddr = {(k, hh): g.valloc(1) for k in range(3) for hh in range(2)}
    waddr = {(win, n): g.valloc(1) for win in range(2) for n in range(2)}
    praw = g.valloc(16, 2)
    vS = g.valloc(8); vSH = g.valloc(8)
    ACC = {}
    for k in range(3):
        for i in range(5):
            for n in range(2):
                ACC[(k, i, n)] = g.valloc(4, 4)
    XF = {(b, i): g.valloc(4, 4) for b in range(2) for i in range(5)}
    WF = {(b, n): g.valloc(4, 4) for b in range(2) for n in range(2)}
    nvgpr = g.nv
    assert nvgpr <= 256, nvgpr

    e(f"s_cmp_ge_u32 s2, {NWG}")
    e("s_cbranch_scc1 L_end")
    e(f"s_load_dwordx16 s[4:19], s[0:1], 0")
    stamp(True); stamp()
    if ATOM:
        e("s_memrealtime s[70:71]"); e("s_memtime s[72:73]")
    e(f"s_and_b32 s{sJ}, s2, 7")
    e(f"s_lshr_b32 s{sT}, s2, 3")
    e(f"s_mul_i32 s{sV}, s{sJ}, 29")
    e(f"s_min_u32 s{sTMP}, s{sJ}, 2")
    e(f"s_add_u32 s{sV}, s{sV}, s{sTMP}")
    e(f"s_add_u32 s{sV}, s{sV}, s{sT}")
    e(f"s_mul_i32 s{sMB}, s{sV}, 7282")
    e(f"s_lshr_b32 s{sMB}, s{sMB}, 16")
    e(f"s_mul_i32 s{sTMP}, s{sMB}, 9")
    e(f"s_sub_u32 s{sNS}, s{sV}, s{sTMP}")
    e(f"s_cmp_ge_u32 s{sMB}, 13")
    e(f"s_cselect_b32 s{sBB}, 1, 0")
    e(f"s_mul_i32 s{sTMP}, s{sBB}, 13")
    e(f"s_sub_u32 s{sBLK}, s{sMB}, s{sTMP}")
    e(f"s_mul_i32 s{sM0}, s{sBLK}, {MT}")
    e(f"s_lshl_b32 s{sN0}, s{sNS}, 6")
    e(f"v_and_b32 v{vL}, 63, v0")
    e(f"v_lshrrev_b32 v{t0}, 6, v0")
    e(f"v_lshrrev_b32 v{vG}, 4, v{vL}")
    e(f"v_readfirstlane_b32 s{sWV}, v{t0}")
    e(f"v_and_b32 v{vT}, 15, v{vL}")
    e("s_nop 3")
    e(f"s_lshl_b32 s{sWV1K}, s{sWV}, 10")
    e(f"s_lshr_b32 s{sTMP}, s{sWV}, 1")
    e(f"s_mul_i32 s{sP80}, s{sTMP}, 80")
    e(f"s_and_b32 s{sQ}, s{sWV}, 1")
    e(f"s_lshl_b32 s{sTMP}, s{sWV}, 3")
    e(f"s_sub_u32 s{sTMP}, 128, s{sTMP}")
    e(f"s_mul_i32 s{sTAIL}, s{sTMP}, {ROWB}")
    e("s_waitcnt lgkmcnt(0)")
    stamp()
    e(f"s_mul_i32 s{sTMP}, s{sBB}, {BATCHB}")
    e(f"s_add_u32 s{R_X}, s{S_X}, s{sTMP}")
    e(f"s_addc_u32 s{R_X+1}, s{S_X+1}, 0")
    e(f"s_and_b32 s{R_X+1}, s{R_X+1}, 0xffff")
    e(f"s_mov_b32 s{R_X+2}, {BATCHB}")
    e(f"s_mov_b32 s{R_X+3}, 0x00020000")
    e(f"s_add_u32 s{R_OUT}, s{S_OUT}, s{sTMP}")
    e(f"s_addc_u32 s{R_OUT+1}, s{S_OUT+1}, 0")
    e(f"s_and_b32 s{R_OUT+1}, s{R_OUT+1}, 0xffff")
    e(f"s_mov_b32 s{R_OUT+2}, {BATCHB}")
    e(f"s_mov_b32 s{R_OUT+3}, 0x00020000")
    for R, P, nb in ((R_W, S_W, WBYTES), (R_MEAN, S_MEAN, 1152), (R_VAR, S_VAR, 1152), (R_G, S_G, 1152), (R_B, S_B, 1152)):
        e(f"s_mov_b32 s{R}, s{P}")
        e(f"s_and_b32 s{R+1}, s{P+1}, 0xffff")
        e(f"s_mov_b32 s{R+2}, {nb}")
        e(f"s_mov_b32 s{R+3}, 0x00020000")
    e(f"v_lshrrev_b32 v{t0}, 3, v{vL}")
    e(f"v_lshrrev_b32 v{t1}, 4, v{vL}")
    e(f"v_lshlrev_b32 v{t1}, 1, v{t1}")
    e(f"v_and_b32 v{t2}, 7, v{vL}")
    e(f"v_xor_b32 v{t2}, v{t2}, v{t1}")
    e(f"v_lshlrev_b32 v{t2}, 4, v{t2}")
    e(f"s_sub_u32 s{sTMP}, s{sM0}, 1")
    e(f"s_lshl_b32 s{sTMP2}, s{sWV}, 3")
    e(f"s_add_u32 s{sTMP}, s{sTMP}, s{sTMP2}")
    e(f"v_add_u32 v{t3}, s{sTMP}, v{t0}")
    e(f"s_movk_i32 s{sTMP2}, {ROWB}")
    e(f"v_mul_lo_u32 v{vX0}, v{t3}, s{sTMP2}")
    e(f"v_add_u32 v{vX0}, v{vX0}, v{t2}")
    e(f"v_add_u32 v{vX1}, 32, v{t3}")
    e(f"v_mul_lo_u32 v{vX1}, v{vX1}, s{sTMP2}")
    e(f"v_add_u32 v{vX1}, v{vX1}, v{t2}")
    e(f"v_cmp_gt_i32 vcc, 0, v{t3}")
    e(f"v_mov_b32 v{t4}, 0x40000000")
    e("s_nop 1")
    e(f"v_cndmask_b32 v{vX0}, v{vX0}, v{t4}, vcc")
    e(f"s_lshl_b32 s{sTMP}, s{sWV}, 3")
    e(f"v_add_u32 v{t3}, s{sTMP}, v{t0}")
    e(f"v_mul_lo_u32 v{vWO}, v{t3}, s{sTMP2}")
    e(f"v_lshrrev_b32 v{t1}, 4, v{vL}")
    e(f"v_and_b32 v{t1}, 1, v{t1}")
    e(f"v_lshlrev_b32 v{t1}, 1, v{t1}")
    e(f"s_lshl_b32 s{sTMP}, s{sQ}, 2")
    e(f"v_or_b32 v{t1}, s{sTMP}, v{t1}")
    e(f"v_and_b32 v{t2}, 7, v{vL}")
    e(f"v_xor_b32 v{t2}, v{t2}, v{t1}")
    e(f"v_lshlrev_b32 v{t2}, 4, v{t2}")
    e(f"v_add_u32 v{vWO}, v{vWO}, v{t2}")
    e(f"s_lshl_b32 s{sTMP}, s{sN0}, 1")
    e(f"v_add_u32 v{vWO}, s{sTMP}, v{vWO}")

    def dma_x(X, jj):
        slot = X % NX
        if jj < 5:
            e(f"s_add_u32 m0, s{sWV1K}, {slot * XS + jj * 4096}")
            if jj == 0:
                e(f"s_movk_i32 s{sSOFF}, {128 * X}")
                g.vmem(('x', X), f"buffer_load_dwordx4 v{vX0}, s[{R_X}:{R_X+3}], s{sSOFF} offen lds")
            else:
                e(f"s_mov_b32 s{sSOFF}, {(jj - 1) * 32 * ROWB + 128 * X}")
                g.vmem(('x', X), f"buffer_load_dwordx4 v{vX1}, s[{R_X}:{R_X+3}], s{sSOFF} offen lds")
        else:
            e(f"s_mov_b32 m0, {slot * XS + 20 * 1024}")
            e(f"s_add_u32 s{sSOFF}, s{sTAIL}, {128 * X}")
            e(f"s_mov_b64 exec, 0xffff")
            g.vmem(('x', X), f"buffer_load_dwordx4 v{vX1}, s[{R_X}:{R_X+3}], s{sSOFF} offen lds")
            e(f"s_mov_b64 exec, -1")
    def dma_w(s):
        X, hh, k = STEPS[s]
        slot = s % NW
        cc = 2 * X + hh
        e(f"s_add_u32 m0, s{sWV1K}, {WB + slot * 4096}")
        e(f"s_mov_b32 s{sSOFF}, {(k * C + 32 * cc) * ROWB}")
        g.vmem(('w', s), f"buffer_load_dwordx4 v{vWO}, s[{R_W}:{R_W+3}], s{sSOFF} offen lds")

    stamp()
    for jj in range(6): dma_x(0, jj)
    for s in range(0, 6): dma_w(s)
    stamp()
    for jj in range(6): dma_x(1, jj)
    for s in range(6, 12): dma_w(s)
    for jj in range(6): dma_x(2, jj)
    for s in range(12, 24): dma_w(s)

    stamp()
    e(f"s_lshl_b32 s{sTMP}, s{sQ}, 5")
    e(f"s_add_u32 s{sTMP}, s{sTMP}, s{sN0}")
    e(f"v_lshlrev_b32 v{t0}, 2, v{vG}")
    e(f"v_add_u32 v{t0}, s{sTMP}, v{t0}")
    e(f"v_lshlrev_b32 v{vPO}, 1, v{t0}")
    for idx, R in enumerate((R_MEAN, R_VAR, R_G, R_B)):
        g.vmem(('p', idx), f"buffer_load_dwordx2 v[{praw+4*idx}:{praw+4*idx+1}], v{vPO}, s[{R}:{R+3}], 0 offen")
        g.vmem(('p', idx), f"buffer_load_dwordx2 v[{praw+4*idx+2}:{praw+4*idx+3}], v{vPO}, s[{R}:{R+3}], 0 offen offset:32")

    for k in range(3):
        e(f"v_add_u32 v{t0}, s{sP80}, v{vT}")
        if k: e(f"v_add_u32 v{t0}, {k}, v{t0}")
        e(f"v_lshrrev_b32 v{t1}, 1, v{t0}")
        e(f"v_and_b32 v{t1}, 3, v{t1}")
        e(f"v_lshlrev_b32 v{t1}, 1, v{t1}")
        e(f"v_lshlrev_b32 v{t2}, 7, v{t0}")
        for hh in range(2):
            e(f"v_add_u32 v{t3}, {4*hh}, v{vG}")
            e(f"v_xor_b32 v{t3}, v{t3}, v{t1}")
            e(f"v_lshl_add_u32 v{xaddr[(k,hh)]}, v{t3}, 4, v{t2}")
    e(f"v_lshrrev_b32 v{t0}, 2, v{vT}")
    e(f"v_and_b32 v{t1}, 3, v{vT}")
    e(f"v_lshl_add_u32 v{t2}, v{vG}, 3, v{t0}")
    e(f"v_lshlrev_b32 v{t2}, 7, v{t2}")
    e(f"v_and_b32 v{t3}, 1, v{vG}")
    e(f"v_lshlrev_b32 v{t3}, 2, v{t3}")
    e(f"v_lshrrev_b32 v{t4}, 1, v{t0}")
    e(f"v_and_b32 v{t4}, 1, v{t4}")
    e(f"v_lshl_add_u32 v{t3}, v{t4}, 1, v{t3}")
    e(f"v_and_b32 v{t4}, 1, v{t1}")
    e(f"v_lshl_add_u32 v{t2}, v{t4}, 3, v{t2}")
    e(f"v_lshrrev_b32 v{t4}, 1, v{t1}")
    e(f"s_lshl_b32 s{sTMP}, s{sQ}, 2")
    e(f"v_add_u32 v{t4}, s{sTMP}, v{t4}")
    for n in range(2):
        e(f"v_add_u32 v{t5}, {2*n}, v{t4}")
        e(f"v_xor_b32 v{t5}, v{t5}, v{t3}")
        e(f"v_lshl_add_u32 v{t5}, v{t5}, 4, v{t2}")
        for win in range(2):
            e(f"v_add_u32 v{waddr[(win,n)]}, {WB + win * 65536}, v{t5}")
    e(f"s_add_u32 s{sTMP}, s{sM0}, s{sP80}")
    e(f"v_add_u32 v{t0}, s{sTMP}, v{vT}")
    e(f"s_movk_i32 s{sTMP2}, {ROWB}")
    e(f"v_mul_lo_u32 v{vOUT}, v{t0}, s{sTMP2}")
    e(f"v_and_b32 v{t1}, 1, v{vG}")
    e(f"v_lshlrev_b32 v{t1}, 5, v{t1}")
    e(f"v_lshrrev_b32 v{t2}, 1, v{vG}")
    e(f"v_lshl_add_u32 v{t1}, v{t2}, 4, v{t1}")
    e(f"s_lshl_b32 s{sTMP}, s{sQ}, 5")
    e(f"s_add_u32 s{sTMP}, s{sTMP}, s{sN0}")
    e(f"s_lshl_b32 s{sTMP}, s{sTMP}, 1")
    e(f"v_add_u32 v{vOUT}, v{vOUT}, v{t1}")
    e(f"v_add_u32 v{vOUT}, s{sTMP}, v{vOUT}")

    g.wait_vm(lambda t: t[0] == 'p')
    def unpack(dst, src, hi):
        if hi: e(f"v_and_b32 v{dst}, 0xffff0000, v{src}")
        else:  e(f"v_lshlrev_b32 v{dst}, 16, v{src}")
    def bf16r_pair(a, b, tmp):
        e(f"v_cvt_pk_bf16_f32 v{tmp}, v{a}, v{b}")
        e("s_nop 0")
        e(f"v_lshlrev_b32 v{a}, 16, v{tmp}")
        e(f"v_and_b32 v{b}, 0xffff0000, v{tmp}")
    e(f"s_mov_b32 s{sTMP}, 0x3727c5ac")
    for n in range(2):
        for rp in range(2):
            a, b2 = t0, t1
            src = praw + 4 * 1 + 2 * n + rp
            unpack(a, src, 0); unpack(b2, src, 1)
            e(f"v_add_f32 v{a}, s{sTMP}, v{a}")
            e(f"v_add_f32 v{b2}, s{sTMP}, v{b2}")
            bf16r_pair(a, b2, t2)
            e(f"v_sqrt_f32 v{a}, v{a}")
            e(f"v_sqrt_f32 v{b2}, v{b2}")
            e("s_nop 0")
            bf16r_pair(a, b2, t2)
            e(f"v_rcp_f32 v{a}, v{a}")
            e(f"v_rcp_f32 v{b2}, v{b2}")
            e("s_nop 0")
            bf16r_pair(a, b2, t2)
            src = praw + 4 * 2 + 2 * n + rp
            unpack(t3, src, 0); unpack(t4, src, 1)
            e(f"v_mul_f32 v{a}, v{a}, v{t3}")
            e(f"v_mul_f32 v{b2}, v{b2}, v{t4}")
            bf16r_pair(a, b2, t2)
            i0 = n * 4 + 2 * rp
            e(f"v_mov_b32 v{vS+i0}, v{a}")
            e(f"v_mov_b32 v{vS+i0+1}, v{b2}")
            srcm = praw + 4 * 0 + 2 * n + rp
            srcb = praw + 4 * 3 + 2 * n + rp
            unpack(t3, srcm, 0); unpack(t4, srcm, 1)
            unpack(t5, srcb, 0); unpack(t2, srcb, 1)
            e(f"v_fma_f32 v{vSH+i0}, -v{t3}, v{a}, v{t5}")
            e(f"v_fma_f32 v{vSH+i0+1}, -v{t4}, v{b2}, v{t2}")

    def read_frags(s, b):
        X, hh, k = STEPS[s]
        out = []
        for i in range(5):
            out.append(f"ds_read_b128 {vr(XF[(b,i)],4)}, v{xaddr[(k,hh)]} offset:{(X % NX) * XS + i * 2048}")
        slot = s % NW
        win = slot // 16
        for n in range(2):
            for h in range(2):
                out.append(f"ds_read_b64_tr_b16 {vr(WF[(b,n)] + 2*h, 2)}, v{waddr[(win,n)]} offset:{(slot - 16*win) * 4096 + h * 512}")
        return out

    g.wait_vm(lambda t: t == ('x', 0) or (t[0] == 'w' and t[1] < 6))
    e("s_barrier")
    stamp()
    for ins in read_frags(0, 0): e(ins)

    nsteps = len(STEPS)
    pend = []
    for s in range(nsteps):
        X, hh, k = STEPS[s]
        b = s % 2
        if s % 18 == 0 and s > 0: stamp()
        e("s_waitcnt lgkmcnt(0)")
        last_of_chunk = (s % 6 == 5)
        if last_of_chunk and s + 1 < nsteps:
            Xn = X + 1
            if 'nobar' not in EXP:
                if 'nodma' not in EXP or Xn < 3:
                    g.wait_vm(lambda t: t == ('x', Xn) or (t[0] == 'w' and 6 * Xn <= t[1] < 6 * Xn + 6))
                e("s_barrier")
            if 'nodma' not in EXP:
                if X + 3 < NCH:
                    for jj in range(6): pend.append(lambda X=X, jj=jj: dma_x(X + 3, jj))
                for s2 in range(6 * (X + 4), min(6 * (X + 5), nsteps)):
                    pend.append(lambda s2=s2: dma_w(s2))
        fill = []
        if s + 1 < nsteps:
            if 'noread' not in EXP: fill += [("ds", ins) for ins in read_frags(s + 1, 1 - b)]
        mf = []
        for i in range(5):
            for n in range(2):
                acc = ACC[(k, i, n)]
                first = (X == 0 and hh == 0)
                cin = "0" if first else vr(acc, 4)
                mf.append(f"v_mfma_f32_16x16x32_bf16 {vr(acc,4)}, {vr(WF[(b,n)],4)}, {vr(XF[(b,i)],4)}, {cin}")
        fi = 0
        for mi, m in enumerate(mf):
            e(m)
            cnt = 0
            while cnt < 2 and fi < len(fill):
                e(fill[fi][1]); fi += 1; cnt += 1
            if fi >= len(fill) and cnt < 2 and pend:
                pend.pop(0)()
        while fi < len(fill):
            e(fill[fi][1]); fi += 1
    assert not pend

    if 'dummy' in EXP:
        for rep in range(540):
            d = XF[(0, rep % 5)]
            e(f"v_mfma_f32_16x16x32_bf16 {vr(d,4)}, {vr(WF[(1,0)],4)}, {vr(XF[(1,1)],4)}, {vr(d,4)}")
    e("; ---- epilogue")
    stamp()
    e("s_nop 7")
    e("s_nop 1")
    LOG2E = 0x3fb8aa3b
    e(f"s_mov_b32 s{sTMP}, {LOG2E | 0x80000000}")
    tmpbase = XF[(0, 0)]
    for i in range(5):
        tb = tmpbase + (i % 2) * 24
        Z = [tb + j for j in range(8)]
        E_ = [tb + 8 + j for j in range(8)]
        P = tb + 16
        for n in range(2):
            for r in range(4):
                j = n * 4 + r
                a0, a1, a2 = ACC[(0, i, n)] + r, ACC[(1, i, n)] + r, ACC[(2, i, n)] + r
                e(f"v_add_f32 v{Z[j]}, v{a0}, v{a1}")
                e(f"v_add_f32 v{Z[j]}, v{Z[j]}, v{a2}")
        for j in range(8):
            e(f"v_fma_f32 v{Z[j]}, v{Z[j]}, v{vS+j}, v{vSH+j}")
        for j in range(8):
            e(f"v_mul_f32 v{E_[j]}, s{sTMP}, v{Z[j]}")
        for j in range(8):
            e(f"v_exp_f32 v{E_[j]}, v{E_[j]}")
        for j in range(8):
            e(f"v_add_f32 v{E_[j]}, 1.0, v{E_[j]}")
        for j in range(8):
            e(f"v_rcp_f32 v{E_[j]}, v{E_[j]}")
        for j in range(8):
            e(f"v_mul_f32 v{Z[j]}, v{Z[j]}, v{E_[j]}")
        e(f"v_cvt_pk_bf16_f32 v{P+0}, v{Z[0]}, v{Z[1]}")
        e(f"v_cvt_pk_bf16_f32 v{P+1}, v{Z[2]}, v{Z[3]}")
        e(f"v_cvt_pk_bf16_f32 v{P+2}, v{Z[4]}, v{Z[5]}")
        e(f"v_cvt_pk_bf16_f32 v{P+3}, v{Z[6]}, v{Z[7]}")
        e("s_nop 1")
        e(f"v_permlane16_swap_b32 v{P+0}, v{P+2}")
        e(f"v_permlane16_swap_b32 v{P+1}, v{P+3}")
        e(f"s_mov_b32 s{sSOFF}, {i * 16 * ROWB}")
        e("s_nop 0")
        g.vmem(('st', i), f"buffer_store_dwordx4 {vr(P,4)}, v{vOUT}, s[{R_OUT}:{R_OUT+3}], s{sSOFF} offen")
    if STAMPS:
        stamp(); stamp(True)
        e("s_load_dwordx2 s[4:5], s[0:1], 64")
        e("s_waitcnt lgkmcnt(0)")
        e("s_mov_b32 s6, 0x10000000")
        e("s_mov_b32 s7, 0x00020000")
        e(f"s_lshl_b32 s{sTMP}, s2, 2")
        e(f"s_add_u32 s{sTMP}, s{sTMP}, s{sWV}")
        e(f"s_lshl_b32 s{sTMP}, s{sTMP}, 7")
        e(f"v_mov_b32 v{t0}, s{sTMP}")
        for i in range(nst[0]):
            e(f"v_mov_b32 v{t1}, s{ST0+2*i}")
            e(f"buffer_store_dword v{t1}, v{t0}, s[4:7], 0 offen offset:{4*i}")
            e("s_nop 1")
    if ATOM:
        e("s_memtime s[74:75]"); e("s_memrealtime s[76:77]")
        e("s_load_dwordx2 s[4:5], s[0:1], 56")
        e("s_waitcnt lgkmcnt(0)")
        e("s_and_b32 s5, s5, 0xffff")
        e("s_mov_b32 s6, 256")
        e("s_mov_b32 s7, 0x00020000")
        e("s_mov_b64 exec, 1")
        e("s_not_b32 s78, s70")
        e("s_sub_u32 s79, s76, s70")
        e("s_sub_u32 s75, s74, s72")
        e(f"v_mov_b32 v{t0}, 0")
        e(f"v_mov_b32 v{t1}, s78")
        e(f"v_mov_b32 v{t2}, s76")
        e(f"v_mov_b32 v{t3}, s75")
        e(f"v_mov_b32 v{t4}, s79")
        e(f"buffer_atomic_umax v{t1}, v{t0}, s[4:7], 0 offen")
        e(f"buffer_atomic_umax v{t2}, v{t0}, s[4:7], 0 offen offset:4")
        e(f"buffer_atomic_umax v{t3}, v{t0}, s[4:7], 0 offen offset:8")
        e(f"buffer_atomic_umax v{t4}, v{t0}, s[4:7], 0 offen offset:12")
        e(f"buffer_atomic_add v{t4}, v{t0}, s[4:7], 0 offen offset:16")
        e(f"buffer_atomic_add v{t3}, v{t0}, s[4:7], 0 offen offset:20")
        e(f"v_mov_b32 v{t1}, s70")
        e(f"buffer_atomic_umax v{t1}, v{t0}, s[4:7], 0 offen offset:24")
        e("s_not_b32 s78, s76")
        e(f"v_mov_b32 v{t2}, s78")
        e(f"buffer_atomic_umax v{t2}, v{t0}, s[4:7], 0 offen offset:28")
    g.label("L_end")
    e("s_endpgm")

    hdr = f"""; generated by dev/gen.py -- conv1d(K=3)+BN+SiLU, MFMA 16x16x32 bf16, LDS-DMA staging
; @launch grid=({NWG},1,1) block=(256,1,1) lds={LDS_BYTES}
.amdgcn_target "amdgcn-amd-amdhsa--gfx950"
.text
.globl {KNAME}
.p2align 8
.type {KNAME},@function
{KNAME}:
"""
    nva = (nvgpr + 3) // 4 * 4
    ftr = f"""
.section .rodata,"a"
.p2align 6
.amdhsa_kernel {KNAME}
  .amdhsa_next_free_vgpr {nva}
  .amdhsa_next_free_sgpr {nsgpr}
  .amdhsa_accum_offset {nva}
  .amdhsa_group_segment_fixed_size 0
  .amdhsa_kernarg_size 72
  .amdhsa_user_sgpr_count 2
  .amdhsa_user_sgpr_kernarg_segment_ptr 1
  .amdhsa_system_sgpr_workgroup_id_x 1
.end_amdhsa_kernel
"""
    return hdr + "\n".join(g.lines) + "\n" + ftr

if __name__ == "__main__":
    out = sys.argv[1] if len(sys.argv) > 1 else "standalone__batchnorm__prompt.s"
    txt = gen(sys.argv[2] if len(sys.argv) > 2 else None)
    open(out, "w").write(txt)
    print("wrote", out, len(txt.splitlines()), "lines")
```

```python
import sys, os

KNAME = "standalone__batchnorm__prompt_kernel"
S = 2048; C = 576; ROWB = 1152
BATCHB = S * ROWB
WBYTES = 3 * C * C * 2
MT = 160; NBLK = 13; NMB = 26; NNS = 9; NWG = NMB * NNS
XS = 168 * 128
NX = 3
WB = NX * XS
NW = 24
LDS_BYTES = WB + NW * 4096
NCH = 9
STEPS = [(X, hh, k) for X in range(NCH) for hh in range(2) for k in range(3)]
EXP = os.environ.get('EXP', '')

class Gen:
    def __init__(self):
        self.lines = []
        self.vm = []
        self.nv = 0
        self.lg = []
    def e(self, s):
        self.lines.append("    " + s)
    def label(self, s):
        self.lines.append(s + ":")
    def valloc(self, n, align=1):
        self.nv = (self.nv + align - 1) // align * align
        r = self.nv; self.nv += n; return r
    def vmem(self, tag, text):
        self.e(text); self.vm.append(tag)
    def wait_vm(self, need):
        last = -1
        for i, t in enumerate(self.vm):
            if need(t): last = i
        assert last >= 0
        n = len(self.vm) - 1 - last
        assert n <= 63
        self.e(f"s_waitcnt vmcnt({n})")
    def dsread(self, dst, n, text):
        self.e(text); self.lg.append(set(range(dst, dst + n)))
    def need(self, regs):
        regs = set(regs)
        last = -1
        for i, s in enumerate(self.lg):
            if s & regs: last = i
        if last < 0: return
        n = len(self.lg) - 1 - last
        assert n <= 15
        self.e(f"s_waitcnt lgkmcnt({n})")
        self.lg = self.lg[last + 1:]
    def lg_all(self):
        if self.lg:
            self.e("s_waitcnt lgkmcnt(0)")
            self.lg = []

def vr(a, n=1):
    return f"v{a}" if n == 1 else f"v[{a}:{a+n-1}]"

def gen(dbg=None):
    g = Gen()
    e = g.e
    STAMPS = dbg == 'stamps'
    nst = [0]
    ST0 = 68
    def stamp(real=False):
        if not STAMPS: return
        i = nst[0]; nst[0] += 1
        assert ST0 + 2*i + 1 < 102, i
        e(f"s_memrealtime s[{ST0+2*i}:{ST0+2*i+1}]" if real else f"s_memtime s[{ST0+2*i}:{ST0+2*i+1}]")
    def dump_stamps(tv0, tv1, n):
        e("s_load_dwordx2 s[4:5], s[0:1], 64")
        e("s_waitcnt lgkmcnt(0)")
        e("s_mov_b32 s6, 0x10000000")
        e("s_mov_b32 s7, 0x00020000")
        e(f"s_lshl_b32 s{sTMP}, s2, 3")
        e(f"s_add_u32 s{sTMP}, s{sTMP}, s{sWV}")
        e(f"s_lshl_b32 s{sTMP}, s{sTMP}, 7")
        e(f"v_mov_b32 v{tv0}, s{sTMP}")
        for i in range(n):
            e(f"v_mov_b32 v{tv1}, s{ST0+2*i}")
            e(f"buffer_store_dword v{tv1}, v{tv0}, s[4:7], 0 offen offset:{4*i}")
            e("s_nop 1")
    S_X, S_W, S_MEAN, S_VAR, S_G, S_B, S_OUT = 4, 6, 8, 10, 12, 14, 16
    R_X, R_W, R_OUT, R_MEAN, R_VAR, R_G, R_B = 20, 24, 28, 32, 36, 40, 44
    sJ, sT, sV, sMB, sNS, sBB, sBLK, sM0, sN0, sWV, sTMP, sTMP2 = 48, 49, 50, 51, 52, 53, 54, 55, 56, 57, 58, 59
    sWV1K, sTAIL, sSOFF, sP80, sQ, sWL = 60, 61, 62, 63, 64, 65
    nsgpr = 102 if STAMPS else 68

    e(f"s_cmp_ge_u32 s2, {NWG}")
    e("s_cbranch_scc1 L_end")
    e(f"s_load_dwordx16 s[4:19], s[0:1], 0")
    stamp(True); stamp()
    e(f"v_lshrrev_b32 v2, 6, v0")
    e(f"v_and_b32 v1, 63, v0")
    e(f"s_and_b32 s{sJ}, s2, 7")
    e(f"v_readfirstlane_b32 s{sWV}, v2")
    e(f"s_lshr_b32 s{sT}, s2, 3")
    e(f"s_mul_i32 s{sV}, s{sJ}, 29")
    e(f"s_min_u32 s{sTMP}, s{sJ}, 2")
    e(f"s_add_u32 s{sV}, s{sV}, s{sTMP}")
    e(f"s_add_u32 s{sV}, s{sV}, s{sT}")
    e(f"s_mul_i32 s{sMB}, s{sV}, 7282")
    e(f"s_lshr_b32 s{sMB}, s{sMB}, 16")
    e(f"s_mul_i32 s{sTMP}, s{sMB}, 9")
    e(f"s_sub_u32 s{sNS}, s{sV}, s{sTMP}")
    e(f"s_cmp_ge_u32 s{sMB}, 13")
    e(f"s_cselect_b32 s{sBB}, 1, 0")
    e(f"s_mul_i32 s{sTMP}, s{sBB}, 13")
    e(f"s_sub_u32 s{sBLK}, s{sMB}, s{sTMP}")
    e(f"s_mul_i32 s{sM0}, s{sBLK}, {MT}")
    e(f"s_lshl_b32 s{sN0}, s{sNS}, 6")
    e(f"s_cmp_ge_u32 s{sWV}, 4")
    e("s_cbranch_scc1 L_loader")
    nst_common = nst[0]

    g.nv = 2
    vL = 1
    vG = g.valloc(1); vT = g.valloc(1)
    t0 = g.valloc(1); t1 = g.valloc(1); t2 = g.valloc(1); t3 = g.valloc(1); t4 = g.valloc(1); t5 = g.valloc(1)
    vOUT = g.valloc(1); vPO = g.valloc(1)
    xaddr = {(k, hh): g.valloc(1) for k in range(3) for hh in range(2)}
    waddr = {(win, n): g.valloc(1) for win in range(2) for n in range(2)}
    vS = g.valloc(8, 2); vSH = g.valloc(8, 2); vS2 = g.valloc(8, 2); vSH2 = g.valloc(8, 2)
    vONE = g.valloc(2, 2)
    ACC = {(i, n): g.valloc(4, 4) for i in range(5) for n in range(2)}
    XFB = g.valloc(48, 4)
    XF = {(b, i): XFB + (b * 6 + i) * 4 for b in range(2) for i in range(5)}
    XFt = {(b, j): XFB + (b * 6 + j) * 4 for b in range(2) for j in range(6)}
    WF = {(b, n): g.valloc(4, 4) for b in range(2) for n in range(2)}
    WFa = {(j, n): g.valloc(4, 4) for j in range(6) for n in range(2)}
    praw = WFa[(0, 0)]
    EZ = g.valloc(8, 4); ET = g.valloc(8, 4); EP = g.valloc(8, 4)
    nvgpr_c = g.nv
    assert nvgpr_c <= 256, nvgpr_c

    e(f"v_lshrrev_b32 v{vG}, 4, v{vL}")
    e(f"v_and_b32 v{vT}, 15, v{vL}")
    e(f"s_lshr_b32 s{sTMP}, s{sWV}, 1")
    e(f"s_mul_i32 s{sP80}, s{sTMP}, 80")
    e(f"s_and_b32 s{sQ}, s{sWV}, 1")
    e(f"s_lshl_b32 s{sTMP}, s{sQ}, 5")
    e(f"s_add_u32 s{sTMP}, s{sTMP}, s{sN0}")
    e(f"v_lshlrev_b32 v{t0}, 2, v{vG}")
    e(f"v_add_u32 v{t0}, s{sTMP}, v{t0}")
    e(f"v_lshlrev_b32 v{vPO}, 1, v{t0}")
    for k in range(3):
        e(f"v_add_u32 v{t0}, s{sP80}, v{vT}")
        if k: e(f"v_add_u32 v{t0}, {k}, v{t0}")
        e(f"v_lshrrev_b32 v{t1}, 1, v{t0}")
        e(f"v_and_b32 v{t1}, 3, v{t1}")
        e(f"v_lshlrev_b32 v{t1}, 1, v{t1}")
        e(f"v_lshlrev_b32 v{t2}, 7, v{t0}")
        for hh in range(2):
            e(f"v_add_u32 v{t3}, {4*hh}, v{vG}")
            e(f"v_xor_b32 v{t3}, v{t3}, v{t1}")
            e(f"v_lshl_add_u32 v{xaddr[(k,hh)]}, v{t3}, 4, v{t2}")
    e(f"v_lshrrev_b32 v{t0}, 2, v{vT}")
    e(f"v_and_b32 v{t1}, 3, v{vT}")
    e(f"v_lshl_add_u32 v{t2}, v{vG}, 3, v{t0}")
    e(f"v_lshlrev_b32 v{t2}, 7, v{t2}")
    e(f"v_and_b32 v{t3}, 1, v{vG}")
    e(f"v_lshlrev_b32 v{t3}, 2, v{t3}")
    e(f"v_lshrrev_b32 v{t4}, 1, v{t0}")
    e(f"v_and_b32 v{t4}, 1, v{t4}")
    e(f"v_lshl_add_u32 v{t3}, v{t4}, 1, v{t3}")
    e(f"v_and_b32 v{t4}, 1, v{t1}")
    e(f"v_lshl_add_u32 v{t2}, v{t4}, 3, v{t2}")
    e(f"v_lshrrev_b32 v{t4}, 1, v{t1}")
    e(f"s_lshl_b32 s{sTMP}, s{sQ}, 2")
    e(f"v_add_u32 v{t4}, s{sTMP}, v{t4}")
    for n in range(2):
        e(f"v_add_u32 v{t5}, {2*n}, v{t4}")
        e(f"v_xor_b32 v{t5}, v{t5}, v{t3}")
        e(f"v_lshl_add_u32 v{t5}, v{t5}, 4, v{t2}")
        for win in range(2):
            e(f"v_add_u32 v{waddr[(win,n)]}, {WB + win * 65536}, v{t5}")
    e(f"s_add_u32 s{sTMP}, s{sM0}, s{sP80}")
    e(f"v_add_u32 v{t0}, s{sTMP}, v{vT}")
    e(f"s_movk_i32 s{sTMP2}, {ROWB}")
    e(f"v_mul_lo_u32 v{vOUT}, v{t0}, s{sTMP2}")
    e(f"v_and_b32 v{t1}, 1, v{vG}")
    e(f"v_lshlrev_b32 v{t1}, 5, v{t1}")
    e(f"v_lshrrev_b32 v{t2}, 1, v{vG}")
    e(f"v_lshl_add_u32 v{t1}, v{t2}, 4, v{t1}")
    e(f"s_lshl_b32 s{sTMP}, s{sQ}, 5")
    e(f"s_add_u32 s{sTMP}, s{sTMP}, s{sN0}")
    e(f"s_lshl_b32 s{sTMP}, s{sTMP}, 1")
    e(f"v_add_u32 v{vOUT}, v{vOUT}, v{t1}")
    e(f"v_add_u32 v{vOUT}, s{sTMP}, v{vOUT}")
    e(f"v_mov_b32 v{vONE}, 1.0")
    e(f"v_mov_b32 v{vONE+1}, 1.0")
    e("s_waitcnt lgkmcnt(0)")
    stamp()
    e(f"s_mul_i32 s{sTMP}, s{sBB}, {BATCHB}")
    e(f"s_add_u32 s{R_OUT}, s{S_OUT}, s{sTMP}")
    e(f"s_addc_u32 s{R_OUT+1}, s{S_OUT+1}, 0")
    e(f"s_and_b32 s{R_OUT+1}, s{R_OUT+1}, 0xffff")
    e(f"s_mov_b32 s{R_OUT+2}, {BATCHB}")
    e(f"s_mov_b32 s{R_OUT+3}, 0x00020000")
    for R, P, nb in ((R_MEAN, S_MEAN, 1152), (R_VAR, S_VAR, 1152), (R_G, S_G, 1152), (R_B, S_B, 1152)):
        e(f"s_mov_b32 s{R}, s{P}")
        e(f"s_and_b32 s{R+1}, s{P+1}, 0xffff")
        e(f"s_mov_b32 s{R+2}, {nb}")
        e(f"s_mov_b32 s{R+3}, 0x00020000")
    for idx, R in enumerate((R_MEAN, R_VAR, R_G, R_B)):
        g.vmem(('p', idx), f"buffer_load_dwordx2 v[{praw+4*idx}:{praw+4*idx+1}], v{vPO}, s[{R}:{R+3}], 0 offen")
        g.vmem(('p', idx), f"buffer_load_dwordx2 v[{praw+4*idx+2}:{praw+4*idx+3}], v{vPO}, s[{R}:{R+3}], 0 offen offset:32")
    g.wait_vm(lambda t: t[0] == 'p')
    def unpack(dst, src, hi):
        if hi: e(f"v_and_b32 v{dst}, 0xffff0000, v{src}")
        else:  e(f"v_lshlrev_b32 v{dst}, 16, v{src}")
    def bf16r_pair(a, b, tmp):
        e(f"v_cvt_pk_bf16_f32 v{tmp}, v{a}, v{b}")
        e("s_nop 0")
        e(f"v_lshlrev_b32 v{a}, 16, v{tmp}")
        e(f"v_and_b32 v{b}, 0xffff0000, v{tmp}")
    e(f"s_mov_b32 s{sTMP}, 0x3727c5ac")
    e(f"s_mov_b32 s{sTMP2}, 0xbfb8aa3b")
    for n in range(2):
        for rp in range(2):
            a, b2 = t0, t1
            src = praw + 4 * 1 + 2 * n + rp
            unpack(a, src, 0); unpack(b2, src, 1)
            e(f"v_add_f32 v{a}, s{sTMP}, v{a}")
            e(f"v_add_f32 v{b2}, s{sTMP}, v{b2}")
            bf16r_pair(a, b2, t2)
            e(f"v_sqrt_f32 v{a}, v{a}")
            e(f"v_sqrt_f32 v{b2}, v{b2}")
            e("s_nop 0")
            bf16r_pair(a, b2, t2)
            e(f"v_rcp_f32 v{a}, v{a}")
            e(f"v_rcp_f32 v{b2}, v{b2}")
            e("s_nop 0")
            bf16r_pair(a, b2, t2)
            src = praw + 4 * 2 + 2 * n + rp
            unpack(t3, src, 0); unpack(t4, src, 1)
            e(f"v_mul_f32 v{a}, v{a}, v{t3}")
            e(f"v_mul_f32 v{b2}, v{b2}, v{t4}")
            bf16r_pair(a, b2, t2)
            i0 = n * 4 + 2 * rp
            e(f"v_mov_b32 v{vS+i0}, v{a}")
            e(f"v_mov_b32 v{vS+i0+1}, v{b2}")
            srcm = praw + 4 * 0 + 2 * n + rp
            srcb = praw + 4 * 3 + 2 * n + rp
            unpack(t3, srcm, 0); unpack(t4, srcm, 1)
            unpack(t5, srcb, 0); unpack(t2, srcb, 1)
            e(f"v_fma_f32 v{vSH+i0}, -v{t3}, v{a}, v{t5}")
            e(f"v_fma_f32 v{vSH+i0+1}, -v{t4}, v{b2}, v{t2}")
            e(f"v_mul_f32 v{vS2+i0}, s{sTMP2}, v{a}")
            e(f"v_mul_f32 v{vS2+i0+1}, s{sTMP2}, v{b2}")
            e(f"v_mul_f32 v{vSH2+i0}, s{sTMP2}, v{vSH+i0}")
            e(f"v_mul_f32 v{vSH2+i0+1}, s{sTMP2}, v{vSH+i0+1}")

    def rd_x(s, i, dst):
        X, hh, k = STEPS[s]
        g.dsread(dst, 4, f"ds_read_b128 {vr(dst,4)}, v{xaddr[(k,hh)]} offset:{(X % NX) * XS + i * 2048}")
    def rd_w(s, n, h, dst):
        slot = s % NW; win = slot // 16
        g.dsread(dst + 2*h, 2, f"ds_read_b64_tr_b16 {vr(dst + 2*h, 2)}, v{waddr[(win,n)]} offset:{(slot - 16*win) * 4096 + h * 512}")
    def reads_for_step(s, b):
        out = []
        out.append(lambda: rd_w(s, 0, 0, WF[(b, 0)])); out.append(lambda: rd_w(s, 0, 1, WF[(b, 0)]))
        out.append(lambda: rd_x(s, 0, XF[(b, 0)]))
        out.append(lambda: rd_w(s, 1, 0, WF[(b, 1)])); out.append(lambda: rd_w(s, 1, 1, WF[(b, 1)]))
        for i in range(1, 5): out.append(lambda i=i: rd_x(s, i, XF[(b, i)]))
        return out

    e("s_barrier")
    stamp()
    for f in reads_for_step(0, 0): f()

    NSTEP_MAIN = 48
    tail_reads = []
    for j in range(6):
        s = NSTEP_MAIN + j
        for n in range(2):
            for h in range(2): tail_reads.append(lambda s=s, n=n, h=h, j=j: rd_w(s, n, h, WFa[(j, n)]))
        tail_reads.append(lambda s=s, j=j: rd_x(s, 0, XFt[(0, j)]))
    tile_reads = {i: [lambda i=i, j=j: rd_x(NSTEP_MAIN + j, i, XFt[(i % 2, j)]) for j in range(6)] for i in range(1, 5)}

    for s in range(NSTEP_MAIN):
        X, hh, k = STEPS[s]
        b = s % 2
        if s % 18 == 0 and s > 0: stamp()
        last_of_chunk = (s % 6 == 5)
        if last_of_chunk:
            g.lg_all()
            e("s_barrier")
        if s + 1 < NSTEP_MAIN:
            fill = reads_for_step(s + 1, 1 - b)
            mf_per = 2
        else:
            fill = tail_reads[:15]; tail_reads = tail_reads[15:]
            mf_per = 2
        fi = 0
        for i in range(5):
            for n in range(2):
                acc = ACC[(i, n)]
                g.need(list(range(WF[(b, n)], WF[(b, n)] + 4)) + list(range(XF[(b, i)], XF[(b, i)] + 4)))
                cin = "0" if s == 0 else vr(acc, 4)
                e(f"v_mfma_f32_16x16x32_bf16 {vr(acc,4)}, {vr(WF[(b,n)],4)}, {vr(XF[(b,i)],4)}, {cin}")
                cnt = 0
                while cnt < mf_per and fi < len(fill):
                    fill[fi](); fi += 1; cnt += 1
        while fi < len(fill):
            fill[fi](); fi += 1

    e("; ---- tail")
    stamp()
    def epi_ops(i):
        ops = []
        P = EP + (i % 2) * 4
        for n in range(2):
            for rp in range(2):
                j = n * 4 + 2 * rp
                a = ACC[(i, n)] + 2 * rp
                ops.append(f"v_pk_fma_f32 {vr(EZ+j,2)}, {vr(a,2)}, {vr(vS+j,2)}, {vr(vSH+j,2)}")
                ops.append(f"v_pk_fma_f32 {vr(ET+j,2)}, {vr(a,2)}, {vr(vS2+j,2)}, {vr(vSH2+j,2)}")
        for j in range(8):
            ops.append(f"v_exp_f32 v{ET+j}, v{ET+j}")
        for j in range(0, 8, 2):
            ops.append(f"v_pk_add_f32 {vr(ET+j,2)}, {vr(ET+j,2)}, {vr(vONE,2)}")
        for j in range(8):
            ops.append(f"v_rcp_f32 v{ET+j}, v{ET+j}")
        for j in range(0, 8, 2):
            ops.append(f"v_pk_mul_f32 {vr(EZ+j,2)}, {vr(EZ+j,2)}, {vr(ET+j,2)}")
        for q in range(4):
            ops.append(f"v_cvt_pk_bf16_f32 v{P+q}, v{EZ+2*q}, v{EZ+2*q+1}")
        ops.append("s_nop 1")
        ops.append(f"v_permlane16_swap_b32 v{P+0}, v{P+2}")
        ops.append(f"v_permlane16_swap_b32 v{P+1}, v{P+3}")
        ops.append(f"s_mov_b32 s{sSOFF}, {i * 16 * ROWB}")
        ops.append("s_nop 0")
        ops.append(("st", i, f"buffer_store_dwordx4 {vr(P,4)}, v{vOUT}, s[{R_OUT}:{R_OUT+3}], s{sSOFF} offen"))
        return ops
    def emit_op(op):
        if isinstance(op, tuple): g.vmem(('st', op[1]), op[2])
        else: e(op)
    def emit_epi(oplist, count):
        n = 0
        while oplist and n < count:
            op = oplist.pop(0)
            emit_op(op); n += 1
    pend_epi = []
    for i in range(5):
        buf = i % 2
        nm = 0
        if i + 1 < 5: tail_reads = tail_reads + tile_reads[i + 1]
        for j in range(6):
            for n in range(2):
                acc = ACC[(i, n)]
                g.need(list(range(WFa[(j, n)], WFa[(j, n)] + 4)) + list(range(XFt[(buf, j)], XFt[(buf, j)] + 4)))
                e(f"v_mfma_f32_16x16x32_bf16 {vr(acc,4)}, {vr(WFa[(j,n)],4)}, {vr(XFt[(buf,j)],4)}, {vr(acc,4)}")
                nm += 1
                if tail_reads:
                    tail_reads.pop(0)()
                    if tail_reads and i == 0: tail_reads.pop(0)()
                if nm >= 2: emit_epi(pend_epi, 3)
        pend_epi = pend_epi + epi_ops(i)
    assert not tail_reads
    e("s_nop 7")
    e("s_nop 1")
    emit_epi(pend_epi, 10000)
    if STAMPS:
        stamp(); stamp(True)
        dump_stamps(t0, t1, nst[0])
    e("s_endpgm")

    nst[0] = nst_common
    g.vm = []; g.lg = []
    g.label("L_loader")
    l0, l1, l2, l3, l4 = 2, 3, 4, 5, 6
    vX0, vX1, vWO = 7, 8, 9
    e(f"s_sub_u32 s{sWL}, s{sWV}, 4")
    e(f"s_lshl_b32 s{sWV1K}, s{sWL}, 10")
    e(f"s_and_b32 s{sQ}, s{sWL}, 1")
    e(f"s_lshl_b32 s{sTMP}, s{sWL}, 3")
    e(f"s_sub_u32 s{sTMP}, 128, s{sTMP}")
    e(f"s_mul_i32 s{sTAIL}, s{sTMP}, {ROWB}")
    e(f"v_lshrrev_b32 v{l0}, 3, v{vL}")
    e(f"v_lshrrev_b32 v{l1}, 4, v{vL}")
    e(f"v_lshlrev_b32 v{l1}, 1, v{l1}")
    e(f"v_and_b32 v{l2}, 7, v{vL}")
    e(f"v_xor_b32 v{l2}, v{l2}, v{l1}")
    e(f"v_lshlrev_b32 v{l2}, 4, v{l2}")
    e(f"s_sub_u32 s{sTMP}, s{sM0}, 1")
    e(f"s_lshl_b32 s{sTMP2}, s{sWL}, 3")
    e(f"s_add_u32 s{sTMP}, s{sTMP}, s{sTMP2}")
    e(f"v_add_u32 v{l3}, s{sTMP}, v{l0}")
    e(f"s_movk_i32 s{sTMP2}, {ROWB}")
    e(f"v_mul_lo_u32 v{vX0}, v{l3}, s{sTMP2}")
    e(f"v_add_u32 v{vX0}, v{vX0}, v{l2}")
    e(f"v_add_u32 v{vX1}, 32, v{l3}")
    e(f"v_mul_lo_u32 v{vX1}, v{vX1}, s{sTMP2}")
    e(f"v_add_u32 v{vX1}, v{vX1}, v{l2}")
    e(f"v_cmp_gt_i32 vcc, 0, v{l3}")
    e(f"v_mov_b32 v{l4}, 0x40000000")
    e("s_nop 1")
    e(f"v_cndmask_b32 v{vX0}, v{vX0}, v{l4}, vcc")
    e(f"s_lshl_b32 s{sTMP}, s{sWL}, 3")
    e(f"v_add_u32 v{l3}, s{sTMP}, v{l0}")
    e(f"v_mul_lo_u32 v{vWO}, v{l3}, s{sTMP2}")
    e(f"v_lshrrev_b32 v{l1}, 4, v{vL}")
    e(f"v_and_b32 v{l1}, 1, v{l1}")
    e(f"v_lshlrev_b32 v{l1}, 1, v{l1}")
    e(f"s_lshl_b32 s{sTMP}, s{sQ}, 2")
    e(f"v_or_b32 v{l1}, s{sTMP}, v{l1}")
    e(f"v_and_b32 v{l2}, 7, v{vL}")
    e(f"v_xor_b32 v{l2}, v{l2}, v{l1}")
    e(f"v_lshlrev_b32 v{l2}, 4, v{l2}")
    e(f"v_add_u32 v{vWO}, v{vWO}, v{l2}")
    e(f"s_lshl_b32 s{sTMP}, s{sN0}, 1")
    e(f"v_add_u32 v{vWO}, s{sTMP}, v{vWO}")
    e("s_waitcnt lgkmcnt(0)")
    stamp()
    e(f"s_mul_i32 s{sTMP}, s{sBB}, {BATCHB}")
    e(f"s_add_u32 s{R_X}, s{S_X}, s{sTMP}")
    e(f"s_addc_u32 s{R_X+1}, s{S_X+1}, 0")
    e(f"s_and_b32 s{R_X+1}, s{R_X+1}, 0xffff")
    e(f"s_mov_b32 s{R_X+2}, {BATCHB}")
    e(f"s_mov_b32 s{R_X+3}, 0x00020000")
    e(f"s_mov_b32 s{R_W}, s{S_W}")
    e(f"s_and_b32 s{R_W+1}, s{S_W+1}, 0xffff")
    e(f"s_mov_b32 s{R_W+2}, {WBYTES}")
    e(f"s_mov_b32 s{R_W+3}, 0x00020000")

    def dma_x(X, jj):
        slot = X % NX
        if jj < 5:
            e(f"s_add_u32 m0, s{sWV1K}, {slot * XS + jj * 4096}")
            if jj == 0:
                e(f"s_movk_i32 s{sSOFF}, {128 * X}")
                g.vmem(('x', X), f"buffer_load_dwordx4 v{vX0}, s[{R_X}:{R_X+3}], s{sSOFF} offen lds")
            else:
                e(f"s_mov_b32 s{sSOFF}, {(jj - 1) * 32 * ROWB + 128 * X}")
                g.vmem(('x', X), f"buffer_load_dwordx4 v{vX1}, s[{R_X}:{R_X+3}], s{sSOFF} offen lds")
        else:
            e(f"s_mov_b32 m0, {slot * XS + 20 * 1024}")
            e(f"s_add_u32 s{sSOFF}, s{sTAIL}, {128 * X}")
            e(f"s_mov_b64 exec, 0xffff")
            g.vmem(('x', X), f"buffer_load_dwordx4 v{vX1}, s[{R_X}:{R_X+3}], s{sSOFF} offen lds")
            e(f"s_mov_b64 exec, -1")
    def dma_w(s):
        X, hh, k = STEPS[s]
        slot = s % NW
        cc = 2 * X + hh
        e(f"s_add_u32 m0, s{sWV1K}, {WB + slot * 4096}")
        e(f"s_mov_b32 s{sSOFF}, {(k * C + 32 * cc) * ROWB}")
        g.vmem(('w', s), f"buffer_load_dwordx4 v{vWO}, s[{R_W}:{R_W+3}], s{sSOFF} offen lds")
    def chunk_ready(Xn):
        return lambda t: t == ('x', Xn) or (t[0] == 'w' and 6 * Xn <= t[1] < 6 * Xn + 6)

    for jj in range(6): dma_x(0, jj)
    for s in range(0, 6): dma_w(s)
    for jj in range(6): dma_x(1, jj)
    for s in range(6, 12): dma_w(s)
    stamp()
    g.wait_vm(chunk_ready(0))
    e("s_barrier")
    stamp()
    for jj in range(6): dma_x(2, jj)
    for s in range(12, 24): dma_w(s)
    for X in range(0, 8):
        g.wait_vm(chunk_ready(X + 1))
        e("s_barrier")
        if X in (0, 2, 5): stamp()
        if X + 3 < NCH:
            for jj in range(6): dma_x(X + 3, jj)
        for s2 in range(6 * (X + 4), min(6 * (X + 5), 54)):
            dma_w(s2)
    if STAMPS:
        stamp(); stamp(True)
        e("s_waitcnt vmcnt(0)")
        dump_stamps(l0, l1, nst[0])
    g.label("L_end")
    e("s_endpgm")

    hdr = f"""; generated by dev/gen2.py -- conv1d(K=3)+BN+SiLU, MFMA 16x16x32 bf16, LDS-DMA loader waves
; @launch grid=({NWG},1,1) block=(512,1,1) lds={LDS_BYTES}
.amdgcn_target "amdgcn-amd-amdhsa--gfx950"
.text
.globl {KNAME}
.p2align 8
.type {KNAME},@function
{KNAME}:
"""
    nva = (nvgpr_c + 7) // 8 * 8
    ftr = f"""
.section .rodata,"a"
.p2align 6
.amdhsa_kernel {KNAME}
  .amdhsa_next_free_vgpr {nva}
  .amdhsa_next_free_sgpr {nsgpr}
  .amdhsa_accum_offset {nva}
  .amdhsa_group_segment_fixed_size 0
  .amdhsa_kernarg_size 72
  .amdhsa_user_sgpr_count 2
  .amdhsa_user_sgpr_kernarg_segment_ptr 1
  .amdhsa_system_sgpr_workgroup_id_x 1
.end_amdhsa_kernel
"""
    return hdr + "\n".join(g.lines) + "\n" + ftr

if __name__ == "__main__":
    out = sys.argv[1] if len(sys.argv) > 1 else "k2.s"
    txt = gen(sys.argv[2] if len(sys.argv) > 2 else None)
    open(out, "w").write(txt)
    print("wrote", out, len(txt.splitlines()), "lines")
```
